```python
import torch

def _softmax(x, axis=-1):
    return torch.softmax(x, dim=axis)

def _gelu(x):
    return torch.nn.functional.gelu(x, approximate='tanh')

def _silu(x):
    return torch.nn.functional.silu(x)

def _sigmoid(x):
    return torch.sigmoid(x)

def _layernorm(x, axis=-1, eps=1e-05):
    m = x.mean(dim=axis, keepdim=True)
    v = x.var(dim=axis, keepdim=True, unbiased=False)
    return (x - m) / torch.sqrt(v + eps)

def _scatter_add(tgt, idx, src, axis=0):
    return tgt.clone().index_add_(axis, idx, src)

def _segment_sum(src, seg, n):
    out = torch.zeros((n,) + src.shape[1:], dtype=src.dtype)
    return out.index_add_(0, seg, src)

def _pad(x, pw):
    flat = tuple((v for pair in reversed(pw) for v in pair))
    return torch.nn.functional.pad(x, flat)
kernel_name = 'recurrent_scan__memory_aug_recurrent_mem_tr__glu_gated_bilinear__prompt'

def setup_inputs():

    _w = lambda a: (lambda t: t.to(torch.bfloat16) if t.is_floating_point() else t)(torch.as_tensor(a))

    def _A_setup():
        B, S, Dm = (1, 2048, 640)
        H, Dh = (32, 192)
        M, seg = (8, 32)
        seg = min(seg, S)
        S = S // seg * seg
        return {'x': _w((lambda *s: torch.randn(*s, dtype=torch.bfloat16) * 0.1)(B, S, Dm)), 'mem0': _w((lambda *s: torch.randn(*s, dtype=torch.bfloat16) * 1.6)(B, M, Dm)), 'Wq': _w((lambda *s: torch.randn(*s, dtype=torch.bfloat16) * 0.8)(Dm, H, Dh) * Dm ** (-0.5)), 'Wk': _w((lambda *s: torch.randn(*s, dtype=torch.bfloat16) * 0.8)(Dm, H, Dh) * Dm ** (-0.5)), 'Wv': _w((lambda *s: torch.randn(*s, dtype=torch.bfloat16) * 1.6)(Dm, H, Dh) * Dm ** (-0.5)), 'Wo': _w((lambda *s: torch.randn(*s, dtype=torch.bfloat16) * 1.6)(H, Dh, Dm) * (H * Dh) ** (-0.5)), 'seg_len': seg}
    _A_in = _A_setup()

    def _B_setup():
        B, S, D, F = (1, 2048, 640, 1536)
        return {'x': _w((lambda *s: torch.randn(*s, dtype=torch.bfloat16) * 0.1)(B, S, D)), 'w_gate': _w((lambda *s: torch.randn(*s, dtype=torch.bfloat16) * 0.4)(D, F) * D ** (-0.5)), 'w_up': _w((lambda *s: torch.randn(*s, dtype=torch.bfloat16) * 0.4)(D, F) * D ** (-0.5)), 'w_down': _w((lambda *s: torch.randn(*s, dtype=torch.bfloat16) * 0.4)(F, D) * F ** (-0.5))}
    _B_in = _B_setup()
    return {'A_x': _A_in['x'], 'A_mem0': _A_in['mem0'], 'A_Wq': _A_in['Wq'], 'A_Wk': _A_in['Wk'], 'A_Wv': _A_in['Wv'], 'A_Wo': _A_in['Wo'], 'A_seg_len': _A_in['seg_len'], 'B_x': _B_in['x'], 'B_w_gate': _B_in['w_gate'], 'B_w_up': _B_in['w_up'], 'B_w_down': _B_in['w_down']}

def reference(A_x, A_mem0, A_Wq, A_Wk, A_Wv, A_Wo, A_seg_len, B_x, B_w_gate, B_w_up, B_w_down):

    def _A_ref(x, mem0, Wq, Wk, Wv, Wo, seg_len):
        B, S, Dm = x.shape
        H, Dh = (Wq.shape[1], Wq.shape[2])
        M = mem0.shape[1]
        scale = Dh ** (-0.5)
        n_seg = S // seg_len
        L = M + seg_len
        idx = torch.arange(L)
        mask = (idx[:, None] < M) | (idx[:, None] >= idx[None, :])
        mem = mem0
        outs = []
        for s in range(n_seg):
            xs = x[:, s * seg_len:(s + 1) * seg_len, :].clone()
            h = torch.concatenate([mem, xs], axis=1)
            q = torch.einsum('btd,dhe->bhte', h, Wq)
            k = torch.einsum('btd,dhe->bhte', h, Wk)
            v = torch.einsum('btd,dhe->bhte', h, Wv)
            scores = torch.einsum('bhqe,bhke->bhqk', q, k) * scale
            scores = torch.where(mask[None, None], scores, -1000000000.0)
            p = _softmax(scores, axis=-1)
            o = torch.einsum('bhqk,bhke->bhqe', p, v)
            o = torch.einsum('bhte,hed->btd', o, Wo)
            mem = o[:, :M, :].clone()
            outs.append(o[:, M:, :])
        return torch.concatenate(outs, axis=1)

    def _B_ref(x, w_gate, w_up, w_down):
        g = torch.einsum('bsd,df->bsf', x, w_gate)
        u = torch.einsum('bsd,df->bsf', x, w_up)
        h = g * u
        return torch.einsum('bsf,fd->bsd', h, w_down)
    x = A_x
    xn = _layernorm(x, axis=-1)
    s = _A_ref(xn, A_mem0, A_Wq, A_Wk, A_Wv, A_Wo, A_seg_len)
    g = _silu(_B_ref(xn, B_w_gate, B_w_up, B_w_down))
    return x + s * g
```

```python
class Asm:
    def __init__(self):
        self.L = []
        self.nlab = 0
    def __call__(self, s):
        for line in s.split("\n"):
            line = line.strip()
            if line:
                self.L.append(("" if line.endswith(":") else "  ") + line)
    def c(self, s):
        self.L.append("  ; " + s)
    def lab(self, base="L"):
        self.nlab += 1
        return f"{base}_{self.nlab}"
    def nop(self, n):
        while n > 0:
            k = min(n, 16)
            self(f"s_nop {k-1}")
            n -= k
    def text(self):
        return "\n".join(self.L) + "\n"

def vr(b, n=1):
    return f"v{b}" if n == 1 else f"v[{b}:{b+n-1}]"
def ar(b, n=1):
    return f"a{b}" if n == 1 else f"a[{b}:{b+n-1}]"
def sr(b, n=1):
    return f"s{b}" if n == 1 else f"s[{b}:{b+n-1}]"
def R(idx, n=1):
    return vr(idx, n) if idx < 256 else ar(idx - 256, n)

def srd(a, d, lo, hi, nbytes):
    a(f"s_mov_b32 s{d}, s{lo}")
    a(f"s_and_b32 s{d+1}, s{hi}, 0xffff")
    a(f"s_mov_b32 s{d+2}, {nbytes}")
    a(f"s_mov_b32 s{d+3}, 0x00020000")

def srd_off(a, d, lo, hi, off, nbytes):
    a(f"s_add_u32 s{d}, s{lo}, {off}")
    a(f"s_addc_u32 s{d+1}, s{hi}, 0")
    a(f"s_and_b32 s{d+1}, s{d+1}, 0xffff")
    a(f"s_mov_b32 s{d+2}, {nbytes}")
    a(f"s_mov_b32 s{d+3}, 0x00020000")

def kernel_begin(a, name):
    a(f".globl {name}\n.p2align 8\n.type {name},@function\n{name}:")

def kernel_desc(name, vgpr, sgpr, accum):
    return f""".amdhsa_kernel {name}
  .amdhsa_next_free_vgpr {vgpr}
  .amdhsa_next_free_sgpr {sgpr}
  .amdhsa_accum_offset {accum}
  .amdhsa_group_segment_fixed_size 0
  .amdhsa_kernarg_size 112
  .amdhsa_user_sgpr_count 2
  .amdhsa_user_sgpr_kernarg_segment_ptr 1
  .amdhsa_system_sgpr_workgroup_id_x 1
  .amdhsa_float_denorm_mode_32 3
.end_amdhsa_kernel
"""
```

```python
from asmlib import *
from layout import *

V_LANE, V_T0, V_T1, V_T2, V_T3 = 1, 2, 3, 4, 5
V_DMA0, V_DMA1 = 6, 7
V_TRB = 8
V_TRA = 12
V_TRN = 16
V_ACT = 20
V_ST = 21
V_TMP = 24
ACC = 64
A_ACT = 0
A_RING = 64
NRING = 8
PD = 4
S_WAVE = 4
S_W = 8
S_W2 = 12
S_A = 16
S_O = 20
S_BLK = 24
S_ACTO = 28
S_LD = 29
S_LR = 30
S_CNT = 31
S_T0, S_T1, S_T2, S_T3 = 32, 33, 34, 35
S_WSLO, S_WSHI = 36, 37

def setup_common(a):
    a(f"v_and_b32 v{V_LANE}, 63, v0")
    a(f"v_lshrrev_b32 v{V_T0}, 6, v0")
    a.nop(1)
    a(f"v_readfirstlane_b32 s{S_WAVE}, v{V_T0}")
    a(f"v_lshlrev_b32 v{V_ACT}, 4, v{V_LANE}")

def setup_tr(a, order):
    l = V_LANE
    a(f"v_lshrrev_b32 v{V_T0}, 4, v{l}")
    a(f"v_bfe_u32 v{V_T1}, v{l}, 2, 2")
    a(f"v_lshlrev_b32 v{V_T2}, {3 if order=='nat' else 2}, v{V_T0}")
    a(f"v_add_u32 v{V_T2}, v{V_T2}, v{V_T1}")
    a(f"v_lshlrev_b32 v{V_T2}, 7, v{V_T2}")
    a(f"v_and_b32 v{V_T3}, 3, v{l}")
    a(f"v_lshl_add_u32 v{V_T2}, v{V_T3}, 3, v{V_T2}")
    a(f"v_lshrrev_b32 v{V_T1}, 1, v{V_T1}")
    a(f"v_and_b32 v{V_T0}, 1, v{V_T0}")
    a(f"v_lshl_or_b32 v{V_T1}, v{V_T0}, 1, v{V_T1}")
    for q in range(4):
        a(f"v_xor_b32 v{V_T0}, {q}, v{V_T1}")
        a(f"v_lshl_add_u32 v{V_TRB+q}, v{V_T0}, 5, v{V_T2}")

def half_off(order):
    return 512 if order == 'nat' else 2048

def setup_dma(a, order, pitch):
    l = V_LANE
    for i in range(2):
        a(f"v_lshrrev_b32 v{V_T0}, 3, v{l}")
        if order == 'nat':
            a(f"v_bfe_u32 v{V_T1}, v{V_T0}, 1, 1")
            if i: a(f"v_or_b32 v{V_T1}, 2, v{V_T1}")
        else:
            a(f"v_lshrrev_b32 v{V_T1}, 1, v{V_T0}")
        a(f"v_bfe_u32 v{V_T2}, v{l}, 1, 2")
        a(f"v_xor_b32 v{V_T2}, v{V_T2}, v{V_T1}")
        a(f"v_and_b32 v{V_T3}, 1, v{l}")
        a(f"v_lshl_or_b32 v{V_T2}, v{V_T2}, 1, v{V_T3}")
        a(f"v_lshlrev_b32 v{V_T2}, 4, v{V_T2}")
        a(f"s_lshl_b32 s{S_T0}, s{S_WAVE}, 4")
        a(f"s_add_u32 s{S_T0}, s{S_T0}, {8*i}")
        a(f"v_add_u32 v{V_T0}, s{S_T0}, v{V_T0}")
        a(f"s_mov_b32 s{S_T1}, {pitch}")
        a(f"v_mul_lo_u32 v{V_T0}, v{V_T0}, s{S_T1}")
        a(f"v_add_u32 v{V_DMA0+i}, v{V_T0}, v{V_T2}")


class Stream:
    def __init__(self, a):
        self.a = a; self.vm = []; self.lg = []; self.q = []
    def vmem(self, text, tag=None):
        self.a(text); self.vm.append(tag)
    def lds(self, text, tag=None):
        self.a(text); self.lg.append(tag)
    def emit(self, op):
        kind, text, tag = op
        if kind == 'v': self.vmem(text, tag)
        elif kind == 'l': self.lds(text, tag)
        elif kind == 'wv': self.wait(vm=tag)
        elif kind == 'wl': self.wait(lg=tag)
        else: self.a(text)
    def push(self, kind, text, tag=None):
        self.q.append((kind, text, tag))
    def side(self, n=1):
        for _ in range(n):
            if self.q: self.emit(self.q.pop(0))
    def flush(self, tag=None):
        if tag is None:
            while self.q: self.emit(self.q.pop(0))
            return
        idx = [i for i, o in enumerate(self.q) if o[2] == tag and o[0] in 'vl']
        if idx:
            for _ in range(idx[-1] + 1): self.emit(self.q.pop(0))
    def _cnt(self, lst, tag):
        idx = [i for i, t in enumerate(lst) if t == tag]
        if not idx: return None
        n = len(lst) - 1 - idx[-1]
        del lst[:idx[-1] + 1]
        return n
    def wait(self, vm=None, lg=None, lg0=False, vm0=False):
        parts = []
        if vm is not None:
            self.flush(vm)
            n = self._cnt(self.vm, vm)
            if n is not None: parts.append(f"vmcnt({min(n,63)})")
        if vm0 and self.vm:
            parts.append("vmcnt(0)"); self.vm = []
        if lg is not None:
            self.flush(lg)
            n = self._cnt(self.lg, lg)
            if n is not None: parts.append(f"lgkmcnt({min(n,15)})")
        if lg0 and self.lg:
            parts.append("lgkmcnt(0)"); self.lg = []
        if parts: self.a("s_waitcnt " + " ".join(parts))

def run_pipe(a, st_, stages, nbuf, order, AD, dma_fn, act_fn, on_frag=None, rate=1, bufbytes=24576, first=True, nxt=None):
    NS = len(stages)
    flat = [(s, f) for s, fl in enumerate(stages) for f in fl]
    def rd(gi):
        s, (off, q, ms, at) = flat[gi]
        lb = (s % nbuf) * bufbytes + off
        base = V_TRB + q
        if lb + half_off(order) > 65000:
            base = V_TRA + q; lb -= 49152
        r = A_RING + 4 * (gi % NRING)
        st_.lds(f"ds_read_b64_tr_b16 a[{r}:{r+1}], v{base} offset:{lb}", ('f', gi))
        st_.lds(f"ds_read_b64_tr_b16 a[{r+2}:{r+3}], v{base} offset:{lb + half_off(order)}", ('f', gi))
    def sync(s):
        st_.wait(vm=('d', s), lg0=True)
        a("s_barrier")
        if s - 1 + nbuf < NS and s >= 1:
            for op in dma_fn(s - 1 + nbuf, ((s - 1) % nbuf) * bufbytes): st_.push(*op)
    for t in range(max(nbuf, AD)):
        if t < nbuf and t < NS:
            for op in dma_fn(t, t * bufbytes): st_.emit(op)
        if t < AD and t < NS and act_fn:
            for op in act_fn(t): st_.emit(op)
    sync(0)
    for gi in range(PD): rd(gi)
    cur = -1
    for gi, (s, (off, q, ms, at)) in enumerate(flat):
        if s != cur:
            cur = s; li = 0
            if act_fn and s + AD < NS:
                for op in act_fn(s + AD): st_.push(*op)
        if at is not None: st_.wait(vm=at)
        j = gi + PD
        if j < len(flat) and flat[j][0] != flat[j-1][0]:
            sync(flat[j][0])
        st_.wait(lg=('f', gi))
        w = ar(A_RING + 4 * (gi % NRING), 4)
        for k, m in enumerate(ms):
            a(m.format(w=w))
            if k == 0 and j < len(flat): rd(j)
            else: st_.side(rate)
        if on_frag: on_frag(s, li)
        li += 1

def mk_dma(NP, srds, soff_fn):
    def f(st, ldsbase):
        ops = []
        for b in range(NP):
            sb, imm = soff_fn(st, b)
            for i in range(2):
                pre = f"s_add_u32 s{S_T2}, s{sb}, {imm}\n" if i == 0 else ""
                ops.append(('v', pre + f"s_add_u32 m0, s{S_LD}, {ldsbase + b*8192 + i*1024}\ns_nop 0\n"
                            f"buffer_load_dwordx4 v{V_DMA0+i}, s[{srds[b]}:{srds[b]+3}], s{S_T2} offen lds", ('d', st)))
        return ops
    return f

def finish_tr(a):
    for q in range(4):
        a(f"v_add_u32 v{V_TRA+q}, 49152, v{V_TRB+q}")
    a(f"s_lshl_b32 s{S_LD}, s{S_WAVE}, 11")


A_ACT2 = 96
V_DMB0 = 16

def proj_stages(NP, NTT, NS, AD, act_tile_bytes, actflag=""):
    NAB = AD + 1
    def act_fn(st):
        if st >= NS: return []
        ops = []
        for kk in range(2):
            for T in range(NTT):
                r = A_ACT2 + ((st % NAB) * 2 * NTT + kk * NTT + T) * 4
                ops.append(('v', f"s_add_u32 s{S_T1}, s{S_ACTO}, {T*act_tile_bytes + (2*st+kk)*1024}\n"
                            f"buffer_load_dwordx4 a[{r}:{r+3}], v{V_ACT}, s[{S_A}:{S_A+3}], s{S_T1} offen {actflag}", ('a', st, kk)))
        return ops
    stages = []
    for st in range(NS):
        fl = []
        for kk in range(2):
            for b in range(NP):
                for q in range(4):
                    nt = b * 4 + q
                    ms = []
                    for T in range(NTT):
                        acc = vr(ACC + (nt * NTT + T) * 4, 4)
                        r = A_ACT2 + ((st % NAB) * 2 * NTT + kk * NTT + T) * 4
                        c = "0" if (st == 0 and kk == 0) else acc
                        ms.append(f"v_mfma_f32_16x16x32_bf16 {acc}, {{w}}, a[{r}:{r+3}], {c}")
                    fl.append((b * 8192 + kk * 4096, q, ms, ('a', st, kk) if (b == 0 and q == 0) else None))
        stages.append(fl)
    return stages, act_fn

def dma_block(st, ldsoff, srd_, sb, imm, vd):
    ops = []
    for i in range(2):
        pre = f"s_add_u32 s{S_T2}, s{sb}, {imm}\n" if i == 0 else ""
        ops.append(('v', pre + f"s_add_u32 m0, s{S_LD}, {ldsoff + i*1024}\ns_nop 0\n"
                    f"buffer_load_dwordx4 v{vd+i}, s[{srd_}:{srd_+3}], s{S_T2} offen lds", ('d', st)))
    return ops

def setup_dma2(a, pitch, dst):
    setup_dma(a, 'dind', pitch)
    if dst != V_DMA0:
        a(f"v_mov_b32 v{dst}, v{V_DMA0}\nv_mov_b32 v{dst+1}, v{V_DMA1}")

def load_ptr(a, sd, koff):
    a(f"s_load_dwordx2 s[{sd}:{sd+1}], s[0:1], {koff}")

def item_qk(a, NTT=4, stf=""):
    st_ = Stream(a)
    load_ptr(a, 40, K_WQ); load_ptr(a, 42, K_WK); load_ptr(a, S_WSLO, K_WS)
    setup_common(a); setup_tr(a, 'dind'); finish_tr(a); setup_dma2(a, H*E*2, V_DMA0)
    a("s_waitcnt lgkmcnt(0)")
    a("s_bitcmp1_b32 s3, 5")
    a("s_cselect_b32 s40, s42, s40\ns_cselect_b32 s41, s43, s41")
    a(f"s_mov_b32 s44, {WS_QX}\ns_cselect_b32 s44, {WS_KX}, s44")
    srd(a, S_W, 40, 41, SZ_W)
    srd_off(a, S_A, S_WSLO, S_WSHI, WS_XN, SZ_XN)
    a(f"s_add_u32 s{S_O}, s{S_WSLO}, s44\ns_addc_u32 s{S_O+1}, s{S_WSHI}, 0\ns_and_b32 s{S_O+1}, s{S_O+1}, 0xffff")
    a(f"s_mov_b32 s{S_O+2}, {SZ_KX}\ns_mov_b32 s{S_O+3}, 0x00020000")
    a("s_and_b32 s45, s3, 31")
    a(f"s_mul_i32 s{S_BLK}, s45, {E*2}")
    a("s_lshr_b32 s46, s3, 6")
    a(f"s_lshl_b32 s46, s46, 2\ns_add_u32 s46, s46, s{S_WAVE}\ns_mul_i32 s46, s46, {NTT}")
    a(f"s_mul_i32 s{S_ACTO}, s46, 20480")
    AD = 2
    stages, act_fn = proj_stages(3, NTT, 10, AD, 20480)
    def dma_fn(st, lb):
        return sum([dma_block(st, lb + b*8192, S_W, S_BLK, st*64*H*E*2 + b*128, V_DMA0) for b in range(3)], [])
    run_pipe(a, st_, stages, 3, 'dind', AD, dma_fn, act_fn)
    a(f"v_lshlrev_b32 v{V_ST}, 3, v{V_LANE}")
    a(f"s_mul_i32 s47, s45, 12288")
    a.nop(8)
    k = 0
    for T in range(NTT):
        a(f"s_add_u32 s{S_T0}, s46, {T}")
        a(f"s_lshr_b32 s{S_T1}, s{S_T0}, 1\ns_mul_i32 s{S_T1}, s{S_T1}, {32*12288}")
        a(f"s_and_b32 s{S_T0}, s{S_T0}, 1\ns_mul_i32 s{S_T0}, s{S_T0}, 1536")
        a(f"s_add_u32 s{S_T1}, s{S_T1}, s{S_T0}\ns_add_u32 s{S_T1}, s{S_T1}, s47")
        for w4 in range(4):
            t = V_TMP + 8 * (k % 5); k += 1
            for u in range(3):
                ac = ACC + ((3*w4+u) * NTT + T) * 4
                a(f"v_cvt_pk_bf16_f32 v{t+2*u}, v{ac}, v{ac+1}")
                a(f"v_cvt_pk_bf16_f32 v{t+2*u+1}, v{ac+2}, v{ac+3}")
            a(f"s_add_u32 s{S_T0}, s{S_T1}, {w4*3072}")
            a(f"buffer_store_dwordx4 v[{t}:{t+3}], v{V_ACT}, s[{S_O}:{S_O+3}], s{S_T0} offen {stf}")
            a(f"buffer_store_dwordx2 v[{t+4}:{t+5}], v{V_ST}, s[{S_O}:{S_O+3}], s{S_T0} offen offset:1024 {stf}")

def second_stages(NTT, vop, zacc, base_stage):
    stages = []
    for st in range(10):
        fl = []
        for b in range(3):
            for kk in range(2):
                for q in range(4):
                    u = 2*b + kk
                    ms = []
                    for T in range(NTT):
                        acc = vr(zacc(st & 1, q, T), 4)
                        c = "0" if u == 0 else acc
                        ms.append(f"v_mfma_f32_16x16x32_bf16 {acc}, {vop(u,T)}, {{w}}, {c}")
                    fl.append((b * 8192 + kk * 4096, q, ms, None))
        stages.append(fl)
    return stages

def item_vz(a, stf=""):
    NTT = 4
    st_ = Stream(a)
    load_ptr(a, 40, K_WV); load_ptr(a, 42, K_WO); load_ptr(a, S_WSLO, K_WS)
    setup_common(a); setup_tr(a, 'dind'); finish_tr(a)
    setup_dma2(a, D*2, V_DMB0); setup_dma2(a, H*E*2, V_DMA0)
    a("s_waitcnt lgkmcnt(0)")
    srd(a, S_W, 40, 41, SZ_W); srd(a, S_W2, 42, 43, SZ_W)
    srd_off(a, S_A, S_WSLO, S_WSHI, WS_XN, SZ_XN)
    srd_off(a, S_O, S_WSLO, S_WSHI, WS_Z, SZ_Z)
    a("s_and_b32 s45, s3, 31")
    a(f"s_mul_i32 s{S_BLK}, s45, {E*2}")
    a(f"s_mul_i32 s{S_BLK+1}, s45, {E*D*2}")
    a("s_lshr_b32 s46, s3, 5")
    a(f"s_lshl_b32 s46, s46, 2\ns_add_u32 s46, s46, s{S_WAVE}\ns_mul_i32 s46, s46, {NTT}")
    a(f"s_mul_i32 s{S_ACTO}, s46, 20480")
    a(f"v_bfe_u32 v{V_T0}, v{V_LANE}, 3, 1\nv_lshlrev_b32 v{V_ST}, 14, v{V_T0}")
    a(f"v_lshrrev_b32 v{V_T0}, 4, v{V_LANE}\nv_lshl_add_u32 v{V_ST}, v{V_T0}, 7, v{V_ST}")
    a(f"v_and_b32 v{V_T0}, 7, v{V_LANE}\nv_lshl_add_u32 v{V_ST}, v{V_T0}, 4, v{V_ST}")
    a(f"s_lshr_b32 s47, s46, 1\ns_mul_i32 s47, s47, {80*16384}\ns_lshl_b32 s{S_T0}, s45, 9\ns_add_u32 s47, s47, s{S_T0}")
    AD = 2
    stages, act_fn = proj_stages(3, NTT, 10, AD, 20480)
    accr = lambda nt, T: ACC + (nt * NTT + T) * 4
    vop = lambda u, T: vr(accr(2*u, T), 4)
    rows = [[accr(1,0), accr(3,0), accr(5,0), accr(7,0)], [accr(9,0), accr(11,0), 32, 48]]
    zacc = lambda s, q, T: rows[s][q] + 4*T
    stages += second_stages(NTT, vop, zacc, 10)
    def dma_fn(st, lb):
        if st < 10:
            return sum([dma_block(st, lb + b*8192, S_W, S_BLK, st*64*H*E*2 + b*128, V_DMA0) for b in range(3)], [])
        return sum([dma_block(st, lb + b*8192, S_W2, S_BLK+1, b*64*D*2 + (st-10)*128, V_DMB0) for b in range(3)], [])
    def cvtV(u):
        for T in range(NTT):
            x, y = accr(2*u, T), accr(2*u+1, T)
            st_.push('x', f"v_cvt_pk_bf16_f32 v{x}, v{x}, v{x+1}\nv_cvt_pk_bf16_f32 v{x+1}, v{x+2}, v{x+3}")
            st_.push('x', f"v_cvt_pk_bf16_f32 v{x+2}, v{y}, v{y+1}\nv_cvt_pk_bf16_f32 v{x+3}, v{y+2}, v{y+3}")
    def zstore(zs, q):
        for sp in range(NTT // 2):
            x, y = zacc(zs & 1, q, 2*sp), zacc(zs & 1, q, 2*sp+1)
            st_.push('x', f"v_cvt_pk_bf16_f32 v{x}, v{x}, v{x+1}\nv_cvt_pk_bf16_f32 v{x+1}, v{x+2}, v{x+3}")
            st_.push('x', f"v_cvt_pk_bf16_f32 v{x+2}, v{y}, v{y+1}\nv_cvt_pk_bf16_f32 v{x+3}, v{y+2}, v{y+3}")
            st_.push('v', f"s_add_u32 s{S_T0}, s47, {sp*80*16384 + (zs*8 + 2*q)*16384}\n"
                          f"buffer_store_dwordx4 v[{x}:{x+3}], v{V_ST}, s[{S_O}:{S_O+3}], s{S_T0} offen {stf}", 'zs')
    def hook(s, li):
        if s == 9 and li >= 12:
            nt = li - 12
            if nt >= 3 and (nt - 3) % 2 == 0: cvtV((nt - 3) // 2)
            if nt == 11:
                st_.flush(); a.nop(8); cvtV(5); st_.flush(); a.nop(2)
        if s >= 11 and li >= 2 and li < 6:
            zstore(s - 11, li - 2)
        if s == 19 and li == 23:
            st_.flush(); a.nop(8)
            for q in range(4): zstore(9, q)
            st_.flush()
    run_pipe(a, st_, stages, 3, 'dind', AD, dma_fn, act_fn, on_frag=hook)

def item_wvo(a, stf=""):
    NTT = 2
    st_ = Stream(a)
    load_ptr(a, 40, K_WV); load_ptr(a, 42, K_WO); load_ptr(a, S_WSLO, K_WS)
    setup_common(a); setup_tr(a, 'dind'); finish_tr(a)
    setup_dma2(a, D*2, V_DMB0)
    a("s_waitcnt lgkmcnt(0)")
    srd(a, S_W, 40, 41, SZ_W); srd(a, S_W2, 42, 43, SZ_W)
    srd_off(a, S_O, S_WSLO, S_WSHI, WS_WVO, SZ_WVO)
    a("s_and_b32 s45, s3, 31")
    a(f"s_mul_i32 s{S_BLK+1}, s45, {E*D*2}")
    a(f"s_lshr_b32 s46, s3, 5\ns_lshl_b32 s46, s46, 2\ns_add_u32 s46, s46, s{S_WAVE}")
    l = V_LANE
    a(f"v_bfe_u32 v{V_T0}, v{l}, 3, 1\nv_lshlrev_b32 v{V_T1}, 4, v{V_T0}")
    a(f"v_bfe_u32 v{V_T0}, v{l}, 1, 1\nv_lshl_add_u32 v{V_T1}, v{V_T0}, 3, v{V_T1}")
    a(f"v_bfe_u32 v{V_T0}, v{l}, 2, 1\nv_lshl_add_u32 v{V_T1}, v{V_T0}, 2, v{V_T1}")
    a(f"v_and_b32 v{V_T0}, 1, v{l}\nv_add_u32 v{V_T1}, v{V_T1}, v{V_T0}")
    a(f"v_mul_u32_u24 v{V_T1}, {H*E*2}, v{V_T1}")
    a(f"v_lshrrev_b32 v{V_T0}, 4, v{l}\nv_lshl_add_u32 v{V_ST+1}, v{V_T0}, 3, v{V_T1}")
    a(f"s_mul_i32 s{S_T0}, s46, {32*H*E*2}\ns_mul_i32 s{S_T1}, s45, {E*2}\ns_add_u32 s{S_T0}, s{S_T0}, s{S_T1}")
    VOPB = 128
    for T in range(NTT):
        a(f"s_add_u32 s{S_T1}, s{S_T0}, {2*T*H*E*2}")
        for u in range(6):
            r = VOPB + (u*NTT + T)*4
            st_.vmem(f"buffer_load_dwordx2 v[{r}:{r+1}], v{V_ST+1}, s[{S_W}:{S_W+3}], s{S_T1} offen offset:{u*64}", 'A')
            st_.vmem(f"buffer_load_dwordx2 v[{r+2}:{r+3}], v{V_ST+1}, s[{S_W}:{S_W+3}], s{S_T1} offen offset:{u*64+32}", 'A')
    a(f"v_bfe_u32 v{V_T0}, v{l}, 3, 1\nv_mul_u32_u24 v{V_ST}, 327680, v{V_T0}")
    a(f"v_lshrrev_b32 v{V_T0}, 4, v{l}\nv_lshl_add_u32 v{V_ST}, v{V_T0}, 8, v{V_ST}")
    a(f"v_and_b32 v{V_T0}, 7, v{l}\nv_lshl_add_u32 v{V_ST}, v{V_T0}, 4, v{V_ST}")
    a(f"s_lshr_b32 s47, s45, 1\ns_mul_i32 s47, s47, 20480\ns_lshl_b32 s{S_T0}, s46, 10\ns_add_u32 s47, s47, s{S_T0}")
    a(f"s_and_b32 s{S_T0}, s45, 1\ns_lshl_b32 s{S_T0}, s{S_T0}, 7\ns_add_u32 s47, s47, s{S_T0}")
    vop = lambda u, T: vr(VOPB + (u*NTT + T)*4, 4)
    zacc = lambda s, q, T: ACC + ((s*4 + q)*NTT + T)*4
    stages = second_stages(NTT, vop, zacc, 0)
    f0 = stages[0][0]; stages[0][0] = (f0[0], f0[1], f0[2], 'A')
    def dma_fn(st, lb):
        return sum([dma_block(st, lb + b*8192, S_W2, S_BLK+1, b*64*D*2 + st*128, V_DMB0) for b in range(3)], [])
    def zstore(zs, q):
        x, y = zacc(zs & 1, q, 0), zacc(zs & 1, q, 1)
        st_.push('x', f"v_cvt_pk_bf16_f32 v{x}, v{x}, v{x+1}\nv_cvt_pk_bf16_f32 v{x+1}, v{x+2}, v{x+3}")
        st_.push('x', f"v_cvt_pk_bf16_f32 v{x+2}, v{y}, v{y+1}\nv_cvt_pk_bf16_f32 v{x+3}, v{y+2}, v{y+3}")
        st_.push('v', f"s_add_u32 s{S_T0}, s47, {(zs*8 + 2*q)*327680}\n"
                      f"buffer_store_dwordx4 v[{x}:{x+3}], v{V_ST}, s[{S_O}:{S_O+3}], s{S_T0} offen {stf}", 'zs')
    def hook(s, li):
        if s >= 1 and li >= 4 and li < 8: zstore(s - 1, li - 4)
        if s == 9 and li == 23:
            st_.flush(); a.nop(8)
            for q in range(4): zstore(9, q)
            st_.flush()
    run_pipe(a, st_, stages, 3, 'dind', 0, dma_fn, None, on_frag=hook, rate=2)

def item_b1(a, stf=""):
    NTT = 4
    st_ = Stream(a)
    load_ptr(a, 40, K_WG); load_ptr(a, 42, K_WU); load_ptr(a, S_WSLO, K_WS)
    setup_common(a); setup_tr(a, 'dind'); finish_tr(a); setup_dma2(a, F*2, V_DMA0)
    a("s_waitcnt lgkmcnt(0)")
    srd(a, S_W, 40, 41, SZ_WB); srd(a, S_W2, 42, 43, SZ_WB)
    srd_off(a, S_A, S_WSLO, S_WSHI, WS_XN, SZ_XN)
    srd_off(a, S_O, S_WSLO, S_WSHI, WS_HX, SZ_HX)
    a("s_mul_hi_u32 s46, s3, 178956971")
    a("s_mul_i32 s45, s46, 24\ns_sub_u32 s45, s3, s45")
    a(f"s_lshl_b32 s{S_BLK}, s45, 7")
    a(f"s_lshl_b32 s46, s46, 2\ns_add_u32 s46, s46, s{S_WAVE}\ns_mul_i32 s46, s46, {NTT}")
    a(f"s_mul_i32 s{S_ACTO}, s46, 20480")
    AD = 2
    stages, act_fn = proj_stages(2, NTT, 10, AD, 20480)
    def dma_fn(st, lb):
        return dma_block(st, lb, S_W, S_BLK, st*64*F*2, V_DMA0) + dma_block(st, lb + 8192, S_W2, S_BLK, st*64*F*2, V_DMA0)
    run_pipe(a, st_, stages, 4, 'dind', AD, dma_fn, act_fn, bufbytes=16384)
    a(f"s_mul_i32 s47, s46, {48*1024}\ns_lshl_b32 s{S_T0}, s45, 11\ns_add_u32 s47, s47, s{S_T0}")
    a.nop(8)
    k = 0
    for T in range(NTT):
        for p in range(2):
            t = V_TMP + 8 * (k % 5); k += 1
            for u in range(2):
                g_ = ACC + ((2*p+u) * NTT + T) * 4
                u_ = ACC + ((4+2*p+u) * NTT + T) * 4
                for hh in range(2):
                    a(f"v_cvt_pk_bf16_f32 v{t+4}, v{g_+2*hh}, v{g_+2*hh+1}")
                    a(f"v_cvt_pk_bf16_f32 v{t+5}, v{u_+2*hh}, v{u_+2*hh+1}")
                    a(f"v_lshlrev_b32 v{t+6}, 16, v{t+4}\nv_lshlrev_b32 v{t+7}, 16, v{t+5}")
                    a(f"v_and_b32 v{t+4}, 0xffff0000, v{t+4}\nv_and_b32 v{t+5}, 0xffff0000, v{t+5}")
                    a(f"v_mul_f32 v{t+6}, v{t+6}, v{t+7}\nv_mul_f32 v{t+4}, v{t+4}, v{t+5}")
                    a(f"v_cvt_pk_bf16_f32 v{t+2*u+hh}, v{t+6}, v{t+4}")
            a(f"s_add_u32 s{S_T0}, s47, {T*48*1024 + p*1024}")
            a(f"buffer_store_dwordx4 v[{t}:{t+3}], v{V_ACT}, s[{S_O}:{S_O+3}], s{S_T0} offen {stf}")

def item_b2(a, stf="", actflag=""):
    NTT = 4
    st_ = Stream(a)
    load_ptr(a, 40, K_WD); load_ptr(a, S_WSLO, K_WS)
    setup_common(a); setup_tr(a, 'dind'); finish_tr(a); setup_dma2(a, D*2, V_DMA0)
    a("s_waitcnt lgkmcnt(0)")
    srd(a, S_W, 40, 41, SZ_WB)
    srd_off(a, S_A, S_WSLO, S_WSHI, WS_HX, SZ_HX)
    srd_off(a, S_O, S_WSLO, S_WSHI, WS_G, SZ_G)
    a("s_mul_hi_u32 s46, s3, 858993460")
    a("s_mul_i32 s45, s46, 5\ns_sub_u32 s45, s3, s45")
    a(f"s_lshl_b32 s{S_BLK}, s45, 8")
    a(f"s_lshl_b32 s46, s46, 2\ns_add_u32 s46, s46, s{S_WAVE}\ns_mul_i32 s46, s46, {NTT}")
    a(f"s_mul_i32 s{S_ACTO}, s46, {48*1024}")
    AD = 2
    stages, act_fn = proj_stages(2, NTT, 24, AD, 48*1024, actflag)
    def dma_fn(st, lb):
        return dma_block(st, lb, S_W, S_BLK, st*64*D*2, V_DMA0) + dma_block(st, lb + 8192, S_W, S_BLK, st*64*D*2 + 128, V_DMA0)
    run_pipe(a, st_, stages, 4, 'dind', AD, dma_fn, act_fn, bufbytes=16384)
    a(f"v_and_b32 v{V_T0}, 15, v{V_LANE}\nv_mul_u32_u24 v{V_ST}, 1280, v{V_T0}")
    a(f"v_lshrrev_b32 v{V_T0}, 4, v{V_LANE}\nv_lshl_add_u32 v{V_ST}, v{V_T0}, 3, v{V_ST}")
    a(f"s_mul_i32 s47, s46, 20480\ns_add_u32 s47, s47, s{S_BLK}")
    a("s_mov_b32 s48, 0xbfb8aa3b")
    a.nop(8)
    k = 0
    for T in range(NTT):
        a(f"s_add_u32 s{S_T0}, s47, {T*20480}")
        for nt in range(8):
            t = V_TMP + 10 * (k % 4); k += 1
            ac = ACC + (nt * NTT + T) * 4
            a(f"v_cvt_pk_bf16_f32 v{t}, v{ac}, v{ac+1}\nv_cvt_pk_bf16_f32 v{t+1}, v{ac+2}, v{ac+3}")
            a(f"v_lshlrev_b32 v{t+2}, 16, v{t}\nv_and_b32 v{t+3}, 0xffff0000, v{t}")
            a(f"v_lshlrev_b32 v{t+4}, 16, v{t+1}\nv_and_b32 v{t+5}, 0xffff0000, v{t+1}")
            for r in range(4): a(f"v_mul_f32 v{t+6+r}, s48, v{t+2+r}")
            for r in range(4): a(f"v_exp_f32 v{t+6+r}, v{t+6+r}")
            for r in range(4): a(f"v_add_f32 v{t+6+r}, 1.0, v{t+6+r}")
            for r in range(4): a(f"v_rcp_f32 v{t+6+r}, v{t+6+r}")
            for r in range(4): a(f"v_mul_f32 v{t+2+r}, v{t+2+r}, v{t+6+r}")
            a(f"v_cvt_pk_bf16_f32 v{t}, v{t+2}, v{t+3}\nv_cvt_pk_bf16_f32 v{t+1}, v{t+4}, v{t+5}")
            a(f"buffer_store_dwordx2 v[{t}:{t+1}], v{V_ST}, s[{S_O}:{S_O+3}], s{S_T0} offen offset:{nt*32} {stf}")

def simple_kernel(a, name, nitems, fn):
    kernel_begin(a, name)
    a(f"s_cmp_ge_u32 s2, {nitems}")
    e = a.lab("L_end")
    a(f"s_cbranch_scc1 {e}")
    a("s_mov_b32 s3, s2")
    fn(a)
    a(f"{e}:")
    a("s_endpgm")
    return kernel_desc(name, 512, 64, 256)
```

```python
from asmlib import *
from layout import *

def dpp_allreduce16(a, op, v, t):
    for sh in (8, 4, 2, 1):
        a.nop(2)
        a(f"{op}_dpp v{t}, v{v}, v{v} row_ror:{sh} row_mask:0xf bank_mask:0xf")
        a(f"v_mov_b32 v{v}, v{t}")

def rne_bf16_inplace(a, v):
    a(f"v_cvt_pk_bf16_f32 v{v}, v{v}, v{v}")
    a(f"v_lshlrev_b32 v{v}, 16, v{v}")

def gen_prep(a, name="prep_kernel"):
    NLN = 128
    kernel_begin(a, name)
    a(f"s_load_dwordx2 s[4:5], s[0:1], {K_X}")
    a(f"s_load_dwordx2 s[6:7], s[0:1], {K_WS}")
    a(f"s_load_dwordx2 s[24:25], s[0:1], {K_MEM0}")
    a("s_waitcnt lgkmcnt(0)")
    a(f"s_cmp_ge_u32 s2, {NLN}")
    a("s_cbranch_scc1 L_prep_init")
    srd(a, 8, 4, 5, SZ_XN)
    srd_off(a, 12, 6, 7, WS_XN, SZ_XN)
    a("v_lshrrev_b32 v1, 4, v0")
    a("v_and_b32 v2, 15, v0")
    a("v_mul_u32_u24 v3, 1280, v1")
    a("v_lshl_add_u32 v3, v2, 4, v3")
    a("s_mul_i32 s3, s2, 20480")
    for i in range(5):
        a(f"buffer_load_dwordx4 v[{8+4*i}:{11+4*i}], v3, s[8:11], s3 offen offset:{256*i}")
    a("s_waitcnt vmcnt(0)")
    for i in range(20):
        a(f"v_lshlrev_b32 v{32+2*i}, 16, v{8+i}")
        a(f"v_and_b32 v{33+2*i}, 0xffff0000, v{8+i}")
    a("v_add_f32 v4, v32, v33")
    for i in range(2, 40):
        a(f"v_add_f32 v4, v4, v{32+i}")
    dpp_allreduce16(a, "v_add_f32", 4, 5)
    a("v_mul_f32 v4, 0x3acccccd, v4")
    a("v_mov_b32 v6, 0")
    for i in range(40):
        a(f"v_sub_f32 v7, v{32+i}, v4")
        a("v_fmac_f32 v6, v7, v7")
    dpp_allreduce16(a, "v_add_f32", 6, 5)
    a("v_mul_f32 v6, 0x3acccccd, v6")
    rne_bf16_inplace(a, 4)
    rne_bf16_inplace(a, 6)
    a("v_add_f32 v6, 0x3727c5ac, v6")
    rne_bf16_inplace(a, 6)
    a("v_sqrt_f32 v6, v6")
    a.nop(1)
    rne_bf16_inplace(a, 6)
    a("v_rcp_f32 v7, v6")
    a.nop(1)
    a("v_fma_f32 v5, -v6, v7, 2.0")
    a("v_mul_f32 v7, v7, v5")
    for i in range(40):
        a(f"v_sub_f32 v{32+i}, v{32+i}, v4")
    for i in range(20):
        a(f"v_cvt_pk_bf16_f32 v{8+i}, v{32+2*i}, v{33+2*i}")
    for i in range(20):
        a(f"v_lshlrev_b32 v{32+2*i}, 16, v{8+i}")
        a(f"v_and_b32 v{33+2*i}, 0xffff0000, v{8+i}")
    for i in range(40):
        a(f"v_mul_f32 v5, v{32+i}, v7")
        a(f"v_fma_f32 v{32+i}, -v5, v6, v{32+i}")
        a(f"v_fma_f32 v{32+i}, v{32+i}, v7, v5")
    for i in range(20):
        a(f"v_cvt_pk_bf16_f32 v{8+i}, v{32+2*i}, v{33+2*i}")
    a("v_lshrrev_b32 v3, 2, v2")
    a("v_lshlrev_b32 v3, 10, v3")
    a("v_and_b32 v5, 1, v2")
    a("v_lshl_add_u32 v3, v5, 9, v3")
    a("v_bfe_u32 v5, v2, 1, 1")
    a("v_lshl_add_u32 v3, v5, 3, v3")
    a("v_lshl_add_u32 v3, v1, 4, v3")
    for i in range(5):
        a(f"s_add_u32 s16, s3, {4096*i}")
        a(f"buffer_store_dwordx2 v[{8+4*i}:{9+4*i}], v3, s[12:15], s16 offen")
        a(f"buffer_store_dwordx2 v[{10+4*i}:{11+4*i}], v3, s[12:15], s16 offen offset:256")
    a("s_endpgm")
    a("L_prep_init:")
    a(f"s_cmp_ge_u32 s2, {NLN+128}")
    a("s_cbranch_scc1 L_prep_end")
    srd(a, 8, 6, 7, 7*MB)
    a(f"s_sub_u32 s3, s2, {NLN}")
    a("v_lshlrev_b32 v3, 4, v0")
    a("v_mov_b32 v8, -1\nv_mov_b32 v9, -1\nv_mov_b32 v10, -1\nv_mov_b32 v11, -1")
    a("s_cmp_lg_u32 s3, 0")
    a("s_cbranch_scc1 L_prep_fill")
    srd(a, 12, 24, 25, M*D*2)
    a("v_and_b32 v4, 7, v0")
    a("v_mul_u32_u24 v4, 1280, v4")
    a("v_lshrrev_b32 v5, 3, v0")
    a("v_lshl_add_u32 v4, v5, 4, v4")
    for i in range(3):
        a(f"buffer_load_dwordx4 v[{12+4*i}:{15+4*i}], v4, s[12:15], 0 offen offset:{512*i}")
    a("s_waitcnt vmcnt(0)")
    for r in range(12, 24):
        a(f"v_min_u32 v{r}, 0xfffffffe, v{r}") if False else a(f"v_min_u32 v{r}, -2, v{r}")
    for side in range(2):
        a(f"s_mov_b32 s16, {side*8192}")
        a(f"buffer_store_dwordx4 v[12:15], v3, s[8:11], s16 offen sc1")
        a(f"s_mov_b32 s16, {side*8192+4096}")
        a(f"buffer_store_dwordx4 v[16:19], v3, s[8:11], s16 offen sc1")
    a("v_cmp_gt_u32 vcc, 128, v0")
    a("s_and_saveexec_b64 s[18:19], vcc")
    for side in range(2):
        a(f"s_mov_b32 s16, {16384+side*8192}")
        a(f"buffer_store_dwordx4 v[20:23], v3, s[8:11], s16 offen sc1")
    a("s_mov_b64 exec, s[18:19]")
    for i in range(8, 12):
        a(f"s_mov_b32 s16, {4096*i}")
        a(f"buffer_store_dwordx4 v[8:11], v3, s[8:11], s16 offen sc1")
    a("v_mov_b32 v12, 0\nv_mov_b32 v13, 0\nv_mov_b32 v14, 0\nv_mov_b32 v15, 0")
    a(f"s_mov_b32 s16, {WS_FLAG}")
    a.nop(2)
    a(f"buffer_store_dwordx4 v[12:15], v3, s[8:11], s16 offen sc1")
    a("s_endpgm")
    a("L_prep_fill:")
    a("s_mul_i32 s3, s3, 49152")
    for i in range(12):
        a(f"s_add_u32 s16, s3, {4096*i}")
        a(f"buffer_store_dwordx4 v[8:11], v3, s[8:11], s16 offen sc1")
    a("L_prep_end:")
    a("s_endpgm")
    return kernel_desc(name, 72, 32, 72)
```

```python
from asmlib import *
from layout import *
import math

NQ, NR = 32, 80
SPIN = 20000
C_SCALE = E ** -0.5 * math.log2(math.e)
import struct
def f2u(x): return struct.unpack("<I", struct.pack("<f", x))[0]

S_WAVE = 4; S_STEP = 5; S_ID = 3
S_MB = 8
S_PB = 12
S_A = 16; S_B = 20; S_C = 24; S_D = 28; S_E = 32
S_WSLO, S_WSHI = 36, 37
S_T0, S_T1, S_T2, S_T3 = 38, 39, 40, 41
S_SIDE_M = 42; S_SIDE_PA = 43; S_SIDE_PB = 44; S_SIDE_P = 45
S_SPIN = 46; S_CNT = 47
S_TM = 48
S_MASK = 52
S_X = 76
V_LANE = 1; V_T0, V_T1, V_T2, V_T3 = 2, 3, 4, 5
V_IDX = 6; V_L16 = 7
MEMOP = 24

import os
TS = bool(os.environ.get('TS'))
WS_TS = 7*MB

def stamp(a, slot):
    if not TS: return
    a(f"s_memrealtime s[{S_TM}:{S_TM+1}]")
    a("s_waitcnt lgkmcnt(0)")
    a(f"v_mov_b32 v{V_T0}, s{S_TM}")
    a(f"s_lshl_b32 s{S_TM+2}, s2, 6\ns_add_u32 s{S_TM+2}, s{S_TM+2}, s{S_STEP}\ns_lshl_b32 s{S_TM+2}, s{S_TM+2}, 2\ns_add_u32 s{S_TM+2}, s{S_TM+2}, s{S_WAVE}\ns_lshl_b32 s{S_TM+2}, s{S_TM+2}, 5")
    a(f"s_add_u32 s{S_TM+2}, s{S_TM+2}, {WS_TS + slot*4}")
    a(f"v_mov_b32 v{V_T1}, 0")
    a("s_mov_b64 exec, 1")
    a(f"buffer_store_dword v{V_T0}, v{V_T1}, s[96:99], s{S_TM+2} offen")
    a("s_mov_b64 exec, -1")

def probe_side(a, srd_, base_sgpr_expr_setup, dst):
    base_sgpr_expr_setup()
    a(f"v_mov_b32 v{V_T0}, 0")
    for side in range(2):
        a(f"s_mov_b32 s{S_T2+side}, -1")
        for k in range(3):
            a(f"s_add_u32 s{S_T1}, s{S_T0}, {side*8192 + k*1024}")
            a(f"s_memtime s[{S_TM}:{S_TM+1}]\ns_waitcnt lgkmcnt(0)")
            a(f"buffer_load_dword v{V_T1}, v{V_T0}, s[{srd_}:{srd_+3}], s{S_T1} offen sc1")
            a("s_waitcnt vmcnt(0)")
            a(f"s_memtime s[{S_TM+2}:{S_TM+3}]\ns_waitcnt lgkmcnt(0)")
            a(f"s_sub_u32 s{S_TM}, s{S_TM+2}, s{S_TM}")
            a(f"s_min_u32 s{S_T2+side}, s{S_T2+side}, s{S_TM}")
    a(f"s_cmp_lt_u32 s{S_T3}, s{S_T2}")
    a(f"s_cselect_b32 s{dst}, 8192, 0")

def poll(a, n, dst, vaddrs, srd_, soffs, tmp):
    L = a.lab("L_poll"); Ld = a.lab("L_pd")
    a(f"s_mov_b32 s{S_CNT}, 0")
    a(f"{L}:")
    for i in range(n):
        v, imm = vaddrs[i]
        a(f"buffer_load_dwordx4 v[{dst+4*i}:{dst+4*i+3}], v{v}, s[{srd_}:{srd_+3}], s{soffs[i]} offen offset:{imm} sc1")
    for i in range(n):
        b = dst + 4*i
        a(f"s_waitcnt vmcnt({n-1-i})")
        if i == 0:
            a(f"v_max3_u32 v{tmp}, v{b}, v{b+1}, v{b+2}\nv_max_u32 v{tmp}, v{tmp}, v{b+3}")
        else:
            a(f"v_max3_u32 v{tmp}, v{tmp}, v{b}, v{b+1}\nv_max3_u32 v{tmp}, v{tmp}, v{b+2}, v{b+3}")
    a(f"v_cmp_eq_u32 vcc, -1, v{tmp}")
    a(f"s_add_u32 s{S_CNT}, s{S_CNT}, 1")
    a(f"s_cbranch_vccz {Ld}")
    a(f"s_cmp_lt_u32 s{S_CNT}, s{S_SPIN}")
    a(f"s_cbranch_scc1 {L}")
    a(f"s_mov_b32 s{S_SPIN}, 0")
    a(f"{Ld}:")

def poll_mem(a):
    a(f"s_lshl_b32 s{S_T0}, s{S_STEP}, 15\ns_add_u32 s{S_T0}, s{S_T0}, s{S_SIDE_M}")
    a(f"s_add_u32 s{S_T1}, s{S_T0}, 4096\ns_add_u32 s{S_T2}, s{S_T0}, 16384")
    so = [S_T0]*4 + [S_T1]*4 + [S_T2]*2
    poll(a, 10, MEMOP, [(V_L16, (k & 3)*1024) for k in range(10)], S_MB, so, V_T0)

def xreduce_g(a, op, v, t1, t2):
    for sw in ("v_permlane32_swap_b32", "v_permlane16_swap_b32"):
        a(f"v_mov_b32 v{t1}, v{v}\nv_mov_b32 v{t2}, v{v}")
        a.nop(2)
        a(f"{sw} v{t1}, v{t2}")
        a.nop(1)
        a(f"{op} v{v}, v{t1}, v{t2}")

def dpp_reduce16(a, op, v, t):
    for sh in (8, 4, 2, 1):
        a.nop(2)
        a(f"{op}_dpp v{v}, v{v}, v{v} row_ror:{sh} row_mask:0xf bank_mask:0xf")

L_WRES = 0
L_KQ = 81920
L_X = 131072
L_SP = 137216
L_STG = 81920

def gen_qk(a):
    ACC = 64; SX = 80; LAND = 84; SPARE = 100
    V_TA = 8
    V_XW, V_XR, V_SPW, V_SPM, V_SPR, V_PST, V_BIAS, V_KR4, V_KR2, V_PXA, V_PXM = 8, 9, 10, 11, 12, 13, 14, 15, 16, 17, 18
    V_DM = 20
    l = V_LANE
    order = [(u, ks, t) for u in range(3) for ks in range(10) for t in range(2)]
    inlds = [o for i, o in enumerate(order) if i % 6 == 3]
    assert len(inlds) == 10
    place = {}
    nreg = 0
    for o in order:
        if o in inlds: place[o] = ('l', inlds.index(o))
        else:
            place[o] = ('r', 256 + 8*nreg if nreg < 32 else 112 + 8*(nreg-32)); nreg += 1
    a(f"s_load_dwordx2 s[{S_X}:{S_X+1}], s[0:1], {K_WQ}\ns_load_dwordx2 s[{S_X+2}:{S_X+3}], s[0:1], {K_WK}\ns_waitcnt lgkmcnt(0)")
    srd(a, S_A, S_X, S_X+1, SZ_W); srd(a, S_B, S_X+2, S_X+3, SZ_W)
    srd_off(a, S_C, S_WSLO, S_WSHI, WS_KX, SZ_KX); srd_off(a, S_D, S_WSLO, S_WSHI, WS_QX, SZ_KX)
    srd_off(a, S_E, S_WSLO, S_WSHI, WS_PX, SZ_PX)
    a(f"v_lshrrev_b32 v{V_T0}, 3, v{l}\ns_lshl_b32 s{S_T0}, s{S_WAVE}, 3\nv_add_u32 v{V_T0}, s{S_T0}, v{V_T0}")
    a(f"v_bfe_u32 v{V_T1}, v{V_T0}, 2, 2\nv_bfe_u32 v{V_T2}, v{l}, 1, 2\nv_xor_b32 v{V_T2}, v{V_T2}, v{V_T1}")
    a(f"v_and_b32 v{V_T3}, 1, v{l}\nv_lshl_or_b32 v{V_T2}, v{V_T2}, 1, v{V_T3}\nv_lshlrev_b32 v{V_T2}, 4, v{V_T2}")
    a(f"v_mul_u32_u24 v{V_T0}, {H*E*2}, v{V_T0}\nv_add_u32 v{V_DM}, v{V_T0}, v{V_T2}")
    a(f"v_bfe_u32 v{V_T0}, v{l}, 5, 1\nv_lshlrev_b32 v{V_T1}, 4, v{V_T0}")
    a(f"v_bfe_u32 v{V_T0}, v{l}, 3, 1\nv_lshl_add_u32 v{V_T1}, v{V_T0}, 3, v{V_T1}\nv_lshlrev_b32 v{V_T2}, 1, v{V_T0}")
    a(f"v_bfe_u32 v{V_T0}, v{l}, 4, 1\nv_lshl_add_u32 v{V_T1}, v{V_T0}, 2, v{V_T1}\nv_or_b32 v{V_T2}, v{V_T2}, v{V_T0}")
    a(f"v_bfe_u32 v{V_T0}, v{l}, 2, 1\nv_add_u32 v{V_T1}, v{V_T1}, v{V_T0}\nv_lshlrev_b32 v{V_T1}, 7, v{V_T1}")
    a(f"v_and_b32 v{V_T0}, 3, v{l}\nv_lshl_add_u32 v{V_T1}, v{V_T0}, 3, v{V_T1}")
    a(f"v_add_u32 v{V_T1}, {L_STG}, v{V_T1}")
    for u in range(3):
        a(f"s_mul_i32 s{S_T0}, s{S_WAVE}, 3\ns_add_u32 s{S_T0}, s{S_T0}, {u}")
        a(f"s_and_b32 s{S_T1}, s{S_T0}, 3\ns_lshr_b32 s{S_T0}, s{S_T0}, 2\ns_lshl_b32 s{S_T0}, s{S_T0}, 12")
        a(f"v_xor_b32 v{V_T0}, s{S_T1}, v{V_T2}\nv_lshl_add_u32 v{V_TA+u}, v{V_T0}, 5, v{V_T1}\nv_add_u32 v{V_TA+u}, s{S_T0}, v{V_TA+u}")
    a(f"s_mul_i32 s{S_X+4}, s{S_ID}, {E*2}")
    a(f"s_lshl_b32 s{S_X+5}, s{S_WAVE}, 10\ns_add_u32 s{S_X+5}, s{S_X+5}, {L_STG}")
    a(f"s_mul_i32 s{S_X+6}, s{S_WAVE}, 20480")
    a(f"v_add_u32 v{V_TA+3}, s{S_X+6}, v{V_L16}")
    def dma(hs):
        for p in range(6):
            a(f"s_add_u32 m0, s{S_X+5}, {(hs%3)*24576 + p*4096}")
            a(f"s_add_u32 s{S_T0}, s{S_X+4}, {hs*32*H*E*2 + (p%3)*128}")
            sd = S_A if p < 3 else S_B
            a(f"buffer_load_dwordx4 v{V_DM}, s[{sd}:{sd+3}], s{S_T0} offen lds")
    dma(0); dma(1)
    for hs in range(20):
        a(f"s_waitcnt vmcnt({6 if hs < 19 else 0}) lgkmcnt(0)")
        a("s_barrier")
        if hs + 2 < 20: dma(hs + 2)
        ks, hf = hs >> 1, hs & 1
        wr = []
        for u in range(3):
            for t in range(2):
                kind, loc = place[(u, ks, t)]
                base = loc + 4*hf if kind == 'r' else MEMOP + 4*len(wr)
                for mm in range(2):
                    a(f"ds_read_b64_tr_b16 {R(base+2*mm,2)}, v{V_TA+u} offset:{(hs%3)*24576 + t*12288 + mm*256}")
                if kind == 'l': wr.append((base, loc))
        if wr:
            a("s_waitcnt lgkmcnt(0)")
            for base, loc in wr:
                a(f"ds_write_b128 v{V_TA+3}, v[{base}:{base+3}] offset:{loc*2048 + hf*1024}")
    a("s_waitcnt lgkmcnt(0)")
    a("s_barrier")
    V_WR = 19
    a(f"v_mov_b32 v{V_WR}, v{V_TA+3}")
    a(f"s_mul_i32 s{S_T0}, s{S_WAVE}, 1536\ns_add_u32 s{S_T0}, s{S_T0}, {L_X}")
    a(f"v_and_b32 v{V_T0}, 15, v{l}\nv_lshlrev_b32 v{V_T0}, 5, v{V_T0}\nv_lshrrev_b32 v{V_T1}, 4, v{l}")
    a(f"v_lshl_add_u32 v{V_XW}, v{V_T1}, 3, v{V_T0}\nv_add_u32 v{V_XW}, s{S_T0}, v{V_XW}")
    a(f"v_lshlrev_b32 v{V_XR}, 3, v{l}\nv_add_u32 v{V_XR}, {L_X}, v{V_XR}")
    a(f"s_mul_i32 s{S_T0}, s{S_WAVE}, 1280\ns_add_u32 s{S_T0}, s{S_T0}, {L_SP}")
    a(f"v_and_b32 v{V_T0}, 15, v{l}\nv_mul_u32_u24 v{V_T2}, 160, v{V_T0}\nv_add_u32 v{V_T2}, s{S_T0}, v{V_T2}")
    a(f"v_lshl_add_u32 v{V_SPW}, v{V_T1}, 5, v{V_T2}\nv_add_u32 v{V_SPW}, 32, v{V_SPW}")
    a(f"v_lshl_add_u32 v{V_SPM}, v{V_T1}, 4, v{V_T2}\nv_subrev_u32 v{V_SPM}, 32, v{V_SPM}")
    a(f"v_add_u32 v{V_T3}, {L_SP+5120}, v{V_L16}")
    a(f"v_cmp_gt_u32 vcc, 8, v{V_T0}")
    a.nop(2)
    a(f"v_cndmask_b32 v{V_SPW}, v{V_T3}, v{V_SPW}, vcc")
    a(f"v_cmp_le_u32 s[{S_T2}:{S_T3}], 2, v{V_T1}")
    a.nop(2)
    a(f"s_and_b64 vcc, vcc, s[{S_T2}:{S_T3}]")
    a.nop(2)
    a(f"v_cndmask_b32 v{V_SPM}, v{V_T3}, v{V_SPM}, vcc")
    a(f"s_lshl_b32 s{S_T0}, s{S_WAVE}, 2\nv_add_u32 v{V_T2}, s{S_T0}, v{V_T1}")
    a(f"v_min_u32 v{V_T3}, 9, v{V_T0}\nv_mul_u32_u24 v{V_SPR}, 160, v{V_T2}\nv_lshl_add_u32 v{V_SPR}, v{V_T3}, 4, v{V_SPR}\nv_add_u32 v{V_SPR}, {L_SP}, v{V_SPR}")
    a(f"v_cmp_gt_u32 vcc, 10, v{V_T0}\nv_mov_b32 v{V_BIAS}, 0xf149f2ca")
    a.nop(1)
    a(f"v_cndmask_b32 v{V_BIAS}, v{V_BIAS}, 0, vcc")
    a(f"s_lshr_b32 s{S_X}, s{S_ID}, 3\ns_mul_i32 s{S_X}, s{S_X}, 5")
    a(f"s_and_b32 s{S_X+1}, s{S_ID}, 1")
    a(f"s_and_b32 s{S_X+2}, s{S_ID}, 3\ns_bfe_u32 s{S_X+3}, s{S_ID}, 0x10002")
    a(f"v_lshrrev_b32 v20, 1, v{V_T3}")
    a(f"v_subrev_u32 v21, 1, v20\nv_xor_b32 v21, s{S_X+1}, v21\nv_add_u32 v21, 1, v21")
    a(f"v_cmp_eq_u32 s[{S_T2}:{S_T3}], 0, v20")
    a.nop(2)
    a(f"v_cndmask_b32 v21, v21, 0, s[{S_T2}:{S_T3}]")
    a(f"v_add_u32 v21, s{S_X}, v21")
    a(f"v_lshrrev_b32 v22, 3, v21\nv_lshlrev_b32 v22, 14, v22\nv_and_b32 v21, 7, v21\nv_lshl_add_u32 v22, v21, 10, v22")
    a(f"s_lshl_b32 s{S_T0}, s{S_X+2}, 1\ns_add_u32 s{S_T0}, s{S_T0}, s{S_X+3}\ns_lshl_b32 s{S_T0}, s{S_T0}, 7")
    a(f"v_add_u32 v22, s{S_T0}, v22\nv_lshl_add_u32 v22, v{V_T2}, 4, v22\nv_and_b32 v21, 1, v{V_T3}\nv_lshl_add_u32 v22, v21, 3, v22")
    a(f"v_mov_b32 v21, 0x7ffffff0")
    a(f"v_cndmask_b32 v{V_PST}, v21, v22, vcc")
    a(f"v_add_u32 v{V_KR4}, {L_KQ}, v{V_L16}\nv_lshlrev_b32 v{V_KR2}, 3, v{l}\nv_add_u32 v{V_KR2}, {L_KQ+1024}, v{V_KR2}")
    a(f"v_xor_b32 v20, s{S_X+1}, v{V_T1}\nv_add_u32 v20, 1, v20\nv_lshlrev_b32 v20, 12, v20")
    a(f"s_lshl_b32 s{S_T0}, s{S_X}, 12\ns_lshl_b32 s{S_T1}, s{S_X+3}, 11\ns_add_u32 s{S_T0}, s{S_T0}, s{S_T1}")
    a(f"s_and_b32 s{S_T1}, s{S_WAVE}, 1\ns_lshl_b32 s{S_T1}, s{S_T1}, 10\ns_add_u32 s{S_T0}, s{S_T0}, s{S_T1}")
    a(f"s_lshl_b32 s{S_T1}, s{S_X+2}, 8\ns_add_u32 s{S_T0}, s{S_T0}, s{S_T1}")
    a(f"v_lshl_add_u32 v21, v{V_T0}, 4, s{S_T0}")
    a(f"v_add_u32 v{V_PXA}, v20, v21")
    a(f"v_lshl_add_u32 v{V_PXM}, v{V_T1}, 3, v21\nv_subrev_u32 v{V_PXM}, 16, v{V_PXM}")
    a(f"v_cmp_le_u32 vcc, 2, v{V_T1}\nv_mov_b32 v20, 0x7ffffff0")
    a.nop(1)
    a(f"v_cndmask_b32 v{V_PXM}, v20, v{V_PXM}, vcc")
    a(f"s_mov_b64 s[{S_MASK}:{S_MASK+1}], vcc")
    a(f"s_and_b32 s{S_T1}, s{S_WAVE}, 1\ns_lshl_b32 s{S_T1}, s{S_T1}, 4\nv_add_u32 v20, s{S_T1}, v{V_T0}")
    a(f"v_lshlrev_b32 v21, 2, v{V_T1}")
    for kt in range(2):
        for r in range(4):
            a(f"v_add_u32 v22, {16*kt+r}, v21")
            sm = S_MASK + 2 + 2*(4*kt + r)
            a(f"v_cmp_le_u32 s[{sm}:{sm+1}], v22, v20")
    a(f"s_mov_b32 s{S_X+8}, {f2u(C_SCALE)}")
    a(f"s_mul_i32 s{S_X+9}, s{S_ID}, 12288")
    a(f"s_mul_i32 s{S_X+10}, s{S_WAVE}, 3072")
    def kq_dma(stepreg_plus):
        a(f"s_add_u32 s{S_T0}, s{S_STEP}, {stepreg_plus}")
        a(f"s_and_b32 s{S_T1}, s{S_T0}, 1\ns_mul_i32 s{S_T1}, s{S_T1}, 24576\ns_add_u32 s{S_T1}, s{S_T1}, s{S_X+10}\ns_add_u32 s{S_T1}, s{S_T1}, {L_KQ}")
        a(f"s_mul_i32 s{S_T0}, s{S_T0}, {32*12288}\ns_add_u32 s{S_T0}, s{S_T0}, s{S_X+9}\ns_add_u32 s{S_T0}, s{S_T0}, s{S_X+10}")
        for isq in range(2):
            sd = S_D if isq else S_C
            a(f"s_add_u32 m0, s{S_T1}, {isq*12288}")
            a.nop(1)
            for i in range(3):
                a(f"buffer_load_dwordx4 v{V_L16}, s[{sd}:{sd+3}], s{S_T0} offen offset:{i*1024} lds")
    a(f"s_mov_b32 s{S_STEP}, 0")
    kq_dma(0)
    Lloop = a.lab("L_qk")
    a(f"{Lloop}:")
    for r in range(16): a(f"v_mov_b32 v{ACC+r}, 0")
    def land(k):
        b = LAND + 8*(k & 1)
        a(f"ds_read_b128 v[{b}:{b+3}], v{V_WR} offset:{k*2048}")
        a(f"ds_read_b128 v[{b+4}:{b+7}], v{V_WR} offset:{k*2048+1024}")
    land(0); land(1)
    a(f"s_and_b32 s{S_X+11}, s{S_STEP}, 1\ns_mul_i32 s{S_X+11}, s{S_X+11}, 24576")
    a(f"s_add_u32 s{S_T0}, s{S_X+11}, s{S_X+10}")
    a(f"v_add_u32 v20, s{S_T0}, v{V_KR4}\nv_add_u32 v21, s{S_T0}, v{V_KR2}")
    a(f"s_cmp_lt_u32 s{S_STEP}, 32\ns_cselect_b32 s{S_SIDE_P}, s{S_SIDE_PA}, s{S_SIDE_PB}")
    poll_mem(a)
    stamp(a, 0)
    a("s_waitcnt lgkmcnt(0)")
    side = []
    def epi(u):
        s0 = ACC + 8*(u & 1)
        ops = []
        for r in range(4): ops.append(f"v_permlane32_swap_b32 v{s0+r}, v{s0+4+r}")
        ops.append("s_nop 0")
        for r in range(4): ops.append(f"v_add_f32 v{s0+r}, v{s0+r}, v{s0+4+r}")
        ops.append(f"v_cvt_pk_bf16_f32 v{s0+4}, v{s0}, v{s0+1}")
        ops.append(f"v_cvt_pk_bf16_f32 v{s0+5}, v{s0+2}, v{s0+3}")
        ops.append(f"ds_write_b64 v{V_XW}, v[{s0+4}:{s0+5}] offset:{u*512}")
        return ops
    SACC = [ACC+8, ACC+12, SX]
    XF = MEMOP; KF0 = MEMOP+4; KF1 = MEMOP+8; XF2 = MEMOP+12; KG0 = MEMOP+14; KG1 = MEMOP+16
    a(f"s_mul_i32 s{S_T0}, s{S_WAVE}, 1536\nv_add_u32 v22, s{S_T0}, v{V_XR}")
    nl = 0
    for i, (u, ks, t) in enumerate(order):
        kind, loc = place[(u, ks, t)]
        acc = ACC + 8*(u & 1) + 4*t
        if kind == 'l':
            a("s_waitcnt lgkmcnt(0)")
            B = vr(LAND + 8*(loc & 1), 8)
        else:
            B = R(loc, 8)
        a(f"v_smfmac_f32_16x16x64_bf16 v[{acc}:{acc+3}], v[{MEMOP+4*ks}:{MEMOP+4*ks+3}], {B}, v{V_IDX}")
        if kind == 'l' and loc + 2 < 10:
            side.insert(0, ('land', loc + 2))
        li = i % 20
        if li == 7 and u >= 1:
            side += epi(u - 1)
            if u == 1:
                side += [f"v_mov_b32 v{ACC+r}, 0" for r in range(8)]
        if u == 2 and li == 11:
            side += [f"ds_read_b64_tr_b16 v[{XF}:{XF+1}], v22", f"ds_read_b64_tr_b16 v[{XF+2}:{XF+3}], v22 offset:512",
                     f"ds_read_b128 v[{KF0}:{KF0+3}], v20", f"ds_read_b128 v[{KF1}:{KF1+3}], v20 offset:1536",
                     f"ds_read_b64 v[{KG0}:{KG0+1}], v21", f"ds_read_b64 v[{KG1}:{KG1+1}], v21 offset:1536"]
        for _ in range(2):
            if side:
                op = side.pop(0)
                if isinstance(op, tuple): land(op[1])
                else: a(op)
    assert not side
    a("s_waitcnt lgkmcnt(0)")
    a(f"v_mfma_f32_16x16x32_bf16 v[{SACC[0]}:{SACC[0]+3}], v[{XF}:{XF+3}], v[{XF}:{XF+3}], 0")
    a(f"v_mfma_f32_16x16x32_bf16 v[{SACC[1]}:{SACC[1]+3}], v[{KF0}:{KF0+3}], v[{XF}:{XF+3}], 0")
    a(f"v_mfma_f32_16x16x32_bf16 v[{SACC[2]}:{SACC[2]+3}], v[{KF1}:{KF1+3}], v[{XF}:{XF+3}], 0")
    a.nop(5)
    for op in epi(2): a(op)
    a(f"ds_read_b64_tr_b16 v[{XF2}:{XF2+1}], v22 offset:1024")
    a("s_waitcnt lgkmcnt(0)")
    a(f"v_mfma_f32_16x16x16_bf16 v[{SACC[0]}:{SACC[0]+3}], v[{XF2}:{XF2+1}], v[{XF2}:{XF2+1}], v[{SACC[0]}:{SACC[0]+3}]")
    a(f"v_mfma_f32_16x16x16_bf16 v[{SACC[1]}:{SACC[1]+3}], v[{KG0}:{KG0+1}], v[{XF2}:{XF2+1}], v[{SACC[1]}:{SACC[1]+3}]")
    a(f"v_mfma_f32_16x16x16_bf16 v[{SACC[2]}:{SACC[2]+3}], v[{KG1}:{KG1+1}], v[{XF2}:{XF2+1}], v[{SACC[2]}:{SACC[2]+3}]")
    a.nop(6)
    a(f"ds_write_b128 v{V_SPM}, v[{SACC[0]}:{SACC[0]+3}]")
    a(f"ds_write_b128 v{V_SPW}, v[{SACC[1]}:{SACC[1]+3}]")
    a(f"ds_write_b128 v{V_SPW}, v[{SACC[2]}:{SACC[2]+3}] offset:16")
    a("s_waitcnt lgkmcnt(0)")
    a("s_barrier")
    Lx = a.lab("L_qkx"); Lj = a.lab("L_qkj")
    a(f"s_cmp_ge_u32 s{S_WAVE}, 2")
    a(f"s_cbranch_scc1 {Lx}")
    P = MEMOP
    for wp in range(4): a(f"ds_read_b128 v[{P+4*wp}:{P+4*wp+3}], v{V_SPR} offset:{wp*1280}")
    a(f"s_lshl_b32 s{S_T0}, s{S_STEP}, 16")
    a(f"s_xor_b32 s{S_T1}, s{S_SIDE_P}, 8192\ns_add_u32 s{S_T1}, s{S_T1}, s{S_T0}\ns_add_u32 s{S_T0}, s{S_T0}, s{S_SIDE_P}")
    a("s_waitcnt lgkmcnt(2)")
    a(f"v_pk_add_f32 v[{P}:{P+1}], v[{P}:{P+1}], v[{P+4}:{P+5}]\nv_pk_add_f32 v[{P+2}:{P+3}], v[{P+2}:{P+3}], v[{P+6}:{P+7}]")
    a("s_waitcnt lgkmcnt(0)")
    a(f"v_pk_add_f32 v[{P+8}:{P+9}], v[{P+8}:{P+9}], v[{P+12}:{P+13}]\nv_pk_add_f32 v[{P+10}:{P+11}], v[{P+10}:{P+11}], v[{P+14}:{P+15}]")
    a(f"v_pk_add_f32 v[{P}:{P+1}], v[{P}:{P+1}], v[{P+8}:{P+9}]\nv_pk_add_f32 v[{P+2}:{P+3}], v[{P+2}:{P+3}], v[{P+10}:{P+11}]")
    for r in range(4): a(f"v_fma_f32 v{P+r}, v{P+r}, s{S_X+8}, v{V_BIAS}")
    a(f"v_max3_f32 v{P+4}, v{P}, v{P+1}, v{P+2}\nv_max_f32 v{P+4}, v{P+4}, v{P+3}")
    dpp_reduce16(a, "v_max_f32", P+4, P+5)
    for r in range(4): a(f"v_sub_f32 v{P+r}, v{P+r}, v{P+4}")
    for r in range(4): a(f"v_exp_f32 v{P+r}, v{P+r}")
    a.nop(1)
    a(f"v_add_f32 v{P+4}, v{P}, v{P+1}\nv_add_f32 v{P+5}, v{P+2}, v{P+3}\nv_add_f32 v{P+4}, v{P+4}, v{P+5}")
    dpp_reduce16(a, "v_add_f32", P+4, P+5)
    a(f"v_rcp_f32 v{P+4}, v{P+4}")
    a.nop(1)
    for r in range(4): a(f"v_mul_f32 v{P+r}, v{P+r}, v{P+4}")
    a(f"v_cvt_pk_bf16_f32 v{P+6}, v{P}, v{P+1}\nv_cvt_pk_bf16_f32 v{P+7}, v{P+2}, v{P+3}")
    a(f"v_min_u32 v{P+6}, -2, v{P+6}\nv_min_u32 v{P+7}, -2, v{P+7}")
    a(f"buffer_store_dwordx2 v[{P+6}:{P+7}], v{V_PST}, s[{S_PB}:{S_PB+3}], s{S_T1} offen sc1")
    a(f"buffer_store_dwordx2 v[{P+6}:{P+7}], v{V_PST}, s[{S_PB}:{S_PB+3}], s{S_T0} offen sc1")
    stamp(a, 1)
    a(f"s_branch {Lj}")
    a(f"{Lx}:")
    XA = ACC
    a(f"s_and_b32 s{S_T1}, s{S_WAVE}, 1\ns_mul_i32 s{S_T1}, s{S_T1}, 1536\ns_add_u32 s{S_T1}, s{S_T1}, s{S_X+11}")
    a(f"v_add_u32 v20, s{S_X+11}, v{V_KR4}\nv_add_u32 v21, s{S_X+11}, v{V_KR2}")
    a(f"v_add_u32 v22, s{S_T1}, v{V_KR4}\nv_add_u32 v23, s{S_T1}, v{V_KR2}")
    for w4 in range(4):
        b = MEMOP if (w4 & 1) == 0 else LAND
        q4, x4, k04, k14, q2, x2, k02, k12 = b, b+4, b+8, b+12, b+16, b+18, b+20, b+22
        a(f"ds_read_b128 v[{q4}:{q4+3}], v22 offset:{12288 + w4*3072}")
        a(f"ds_read_b64 v[{q2}:{q2+1}], v23 offset:{12288 + w4*3072}")
        a(f"ds_read_b64_tr_b16 v[{x4}:{x4+1}], v{V_XR} offset:{w4*1536}")
        a(f"ds_read_b64_tr_b16 v[{x4+2}:{x4+3}], v{V_XR} offset:{w4*1536+512}")
        a(f"ds_read_b64_tr_b16 v[{x2}:{x2+1}], v{V_XR} offset:{w4*1536+1024}")
        a(f"ds_read_b128 v[{k04}:{k04+3}], v20 offset:{w4*3072}")
        a(f"ds_read_b128 v[{k14}:{k14+3}], v20 offset:{w4*3072+1536}")
        a(f"ds_read_b64 v[{k02}:{k02+1}], v21 offset:{w4*3072}")
        a(f"ds_read_b64 v[{k12}:{k12+1}], v21 offset:{w4*3072+1536}")
        a("s_waitcnt lgkmcnt(0)")
        for tI, (A4, A2) in enumerate([(x4, x2), (k04, k02), (k14, k12)]):
            ac = vr(XA + 4*tI, 4)
            a(f"v_mfma_f32_16x16x32_bf16 {ac}, v[{A4}:{A4+3}], v[{q4}:{q4+3}], {'0' if w4 == 0 else ac}")
        a.nop(4)
        for tI, (A4, A2) in enumerate([(x4, x2), (k04, k02), (k14, k12)]):
            ac = vr(XA + 4*tI, 4)
            a(f"v_mfma_f32_16x16x16_bf16 {ac}, v[{A2}:{A2+1}], v[{q2}:{q2+1}], {ac}")
        a.nop(4)
    a.nop(8)
    a(f"v_mov_b32 v{MEMOP}, 0xf149f2ca")
    for r in range(12): a(f"v_mul_f32 v{XA+r}, s{S_X+8}, v{XA+r}")
    for r in range(12):
        sm = S_MASK if r < 4 else S_MASK + 2 + 2*(r-4)
        a(f"v_cndmask_b32 v{XA+r}, v{MEMOP}, v{XA+r}, s[{sm}:{sm+1}]")
    m_ = MEMOP+1
    a(f"v_max3_f32 v{m_}, v{XA}, v{XA+1}, v{XA+2}")
    for r in range(3, 11, 2): a(f"v_max3_f32 v{m_}, v{m_}, v{XA+r}, v{XA+r+1}")
    a(f"v_max_f32 v{m_}, v{m_}, v{XA+11}")
    xreduce_g(a, "v_max_f32", m_, MEMOP+2, MEMOP+3)
    for r in range(12): a(f"v_sub_f32 v{XA+r}, v{XA+r}, v{m_}")
    for r in range(12): a(f"v_exp_f32 v{XA+r}, v{XA+r}")
    a.nop(1)
    a(f"v_add_f32 v{m_}, v{XA}, v{XA+1}")
    for r in range(2, 12): a(f"v_add_f32 v{m_}, v{m_}, v{XA+r}")
    xreduce_g(a, "v_add_f32", m_, MEMOP+2, MEMOP+3)
    a(f"v_rcp_f32 v{m_}, v{m_}")
    a.nop(1)
    for r in range(12): a(f"v_mul_f32 v{XA+r}, v{XA+r}, v{m_}")
    o = MEMOP + 4
    for r in range(6): a(f"v_cvt_pk_bf16_f32 v{o+r if r >= 2 else o+6+r}, v{XA+2*r}, v{XA+2*r+1}")
    a(f"s_mul_i32 s{S_T0}, s{S_STEP}, 81920")
    a(f"buffer_store_dwordx4 v[{o+2}:{o+5}], v{V_PXA}, s[{S_E}:{S_E+3}], s{S_T0} offen sc1")
    a(f"buffer_store_dwordx2 v[{o+6}:{o+7}], v{V_PXM}, s[{S_E}:{S_E+3}], s{S_T0} offen sc1")
    a("s_waitcnt vmcnt(0)")
    a(f"s_lshl_b32 s{S_T0}, s{S_STEP}, 2\ns_add_u32 s{S_T0}, s{S_T0}, {WS_FLAG}")
    a(f"v_mov_b32 v{V_T0}, 1\nv_mov_b32 v{V_T1}, 0")
    a("s_mov_b64 exec, 1")
    a(f"buffer_atomic_add v{V_T0}, v{V_T1}, s[{S_MB}:{S_MB+3}], s{S_T0} offen sc1")
    a("s_mov_b64 exec, -1")
    stamp(a, 1)
    a(f"{Lj}:")
    kq_dma(1)
    a("s_waitcnt vmcnt(0) lgkmcnt(0)")
    a("s_barrier")
    a(f"s_add_u32 s{S_STEP}, s{S_STEP}, 1")
    a(f"s_cmp_lt_u32 s{S_STEP}, {NSEG}")
    a(f"s_cbranch_scc1 {Lloop}")
    a("s_endpgm")

R_Z = 0
R_U = 65536
R_RED = 81920
R_XRED = 86016

def gen_red(a):
    l = V_LANE
    UACC = 64; YF = 80; TMP = 100; PX = 112; PM = 112
    V_UW, V_YU, V_YZ, V_RR, V_MST, V_XRR, V_OUT = 8, 9, 10, 11, 12, 13, 14
    V_A0, V_A1, V_A2 = 16, 17, 18
    a(f"s_load_dwordx2 s[{S_X}:{S_X+1}], s[0:1], {K_X}\ns_load_dwordx2 s[{S_X+2}:{S_X+3}], s[0:1], {K_OUT}\ns_waitcnt lgkmcnt(0)")
    srd_off(a, S_A, S_WSLO, S_WSHI, WS_WVO, SZ_WVO)
    srd_off(a, S_B, S_WSLO, S_WSHI, WS_Z, SZ_Z)
    srd_off(a, S_C, S_WSLO, S_WSHI, WS_PX, SZ_PX)
    srd(a, S_D, S_X, S_X+1, SZ_XN); srd(a, S_E, S_X+2, S_X+3, SZ_XN)
    S_G = 84
    srd_off(a, S_G, S_WSLO, S_WSHI, WS_G, SZ_G)
    a(f"s_sub_u32 s{S_ID}, s{S_ID}, {NQ}")
    a(f"s_mul_i32 s{S_T0}, s{S_ID}, 327680\ns_mul_i32 s{S_T1}, s{S_WAVE}, 81920\ns_add_u32 s{S_T0}, s{S_T0}, s{S_T1}")
    for f in range(40):
        if f % 2 == 0 and f: a(f"s_add_u32 s{S_T0}, s{S_T0}, 4096")
        for hf in range(2):
            a(f"buffer_load_dwordx4 {R(192+8*f+4*hf,4)}, v{V_L16}, s[{S_A}:{S_A+3}], s{S_T0} offen offset:{(f%2)*2048+hf*1024}")
        if f == 28: a("s_waitcnt vmcnt(20)")
    a(f"v_and_b32 v{V_T0}, 7, v{l}\nv_bfe_u32 v{V_T1}, v{l}, 3, 1\nv_lshrrev_b32 v{V_T2}, 4, v{l}")
    a(f"v_lshrrev_b32 v{V_T3}, 1, v{V_T2}\nv_lshl_add_u32 v{V_T3}, v{V_T3}, 1, v{V_T1}\nv_lshlrev_b32 v{V_UW}, 7, v{V_T3}")
    a(f"v_lshl_add_u32 v{V_UW}, v{V_T0}, 4, v{V_UW}\nv_and_b32 v{V_T3}, 1, v{V_T2}\nv_lshl_add_u32 v{V_UW}, v{V_T3}, 3, v{V_UW}")
    a(f"s_lshl_b32 s{S_T0}, s{S_WAVE}, 10\ns_add_u32 s{S_T0}, s{S_T0}, {R_U}\nv_add_u32 v{V_UW}, s{S_T0}, v{V_UW}")
    a(f"v_lshl_add_u32 v20, v{V_T1}, 2, v{V_T2}")
    a(f"v_lshlrev_b32 v{V_YU}, 7, v20\nv_lshl_add_u32 v{V_YU}, v{V_T0}, 4, v{V_YU}\nv_add_u32 v{V_YU}, s{S_T0}, v{V_YU}")
    a(f"v_lshlrev_b32 v{V_YZ}, 9, v20\nv_lshl_add_u32 v{V_YZ}, v{V_T0}, 4, v{V_YZ}\nv_lshl_add_u32 v{V_YZ}, v{V_T3}, 7, v{V_YZ}")
    a(f"s_lshl_b32 s{S_T1}, s{S_WAVE}, 12\nv_add_u32 v{V_YZ}, s{S_T1}, v{V_YZ}")
    a(f"v_lshl_add_u32 v20, v{V_T1}, 4, v{V_T0}\nv_lshlrev_b32 v{V_RR}, 4, v20\nv_add_u32 v{V_RR}, {R_RED}, v{V_RR}")
    a(f"s_lshr_b32 s{S_T0}, s{S_ID}, 3\ns_lshr_b32 s{S_T1}, s{S_T0}, 3\ns_lshl_b32 s{S_T1}, s{S_T1}, 14\ns_and_b32 s{S_T0}, s{S_T0}, 7\ns_lshl_b32 s{S_T0}, s{S_T0}, 10")
    a(f"s_add_u32 s{S_T0}, s{S_T0}, s{S_T1}\ns_and_b32 s{S_T1}, s{S_ID}, 7\ns_lshl_b32 s{S_T1}, s{S_T1}, 7\ns_add_u32 s{S_T0}, s{S_T0}, s{S_T1}")
    a(f"v_lshlrev_b32 v{V_MST}, 4, v{V_T0}\nv_lshl_add_u32 v{V_MST}, v{V_T1}, 3, v{V_MST}\nv_lshl_add_u32 v{V_MST}, v{V_T3}, 13, v{V_MST}\nv_add_u32 v{V_MST}, s{S_T0}, v{V_MST}")
    a(f"v_cmp_gt_u32 vcc, 32, v{l}\nv_mov_b32 v20, 0x7ffffff0")
    a.nop(1)
    a(f"v_cndmask_b32 v{V_MST}, v20, v{V_MST}, vcc")
    a(f"s_mov_b64 s[{S_MASK}:{S_MASK+1}], vcc")
    a(f"v_and_b32 v20, 31, v{l}\nv_lshlrev_b32 v{V_XRR}, 4, v20\nv_lshrrev_b32 v21, 5, v{l}\nv_lshl_add_u32 v{V_XRR}, v21, 10, v{V_XRR}\nv_add_u32 v{V_XRR}, {R_XRED}, v{V_XRR}")
    a(f"v_and_b32 v20, 15, v{l}\nv_lshl_add_u32 v20, v21, 4, v20\nv_mul_u32_u24 v{V_OUT}, 1280, v20\nv_lshl_add_u32 v{V_OUT}, v{V_T3}, 3, v{V_OUT}")
    a(f"s_lshl_b32 s{S_T0}, s{S_ID}, 4\nv_add_u32 v{V_OUT}, s{S_T0}, v{V_OUT}")
    a(f"s_lshl_b32 s{S_X+4}, s{S_ID}, 14\ns_lshl_b32 s{S_T0}, s{S_WAVE}, 12\ns_add_u32 s{S_X+4}, s{S_X+4}, s{S_T0}")
    a(f"s_lshl_b32 s{S_X+5}, s{S_WAVE}, 12")
    a(f"s_mul_i32 s{S_X+6}, s{S_WAVE}, 20480")
    a(f"s_lshl_b32 s{S_X+7}, s{S_WAVE}, 10")
    def z_dma(plus):
        a(f"s_add_u32 s{S_T0}, s{S_STEP}, {plus}")
        a(f"s_and_b32 s{S_T1}, s{S_T0}, 3\ns_lshl_b32 s{S_T1}, s{S_T1}, 14\ns_add_u32 m0, s{S_T1}, s{S_X+5}")
        a(f"s_mul_i32 s{S_T0}, s{S_T0}, {80*16384}\ns_add_u32 s{S_T0}, s{S_T0}, s{S_X+4}")
        for i in range(4):
            a(f"buffer_load_dwordx4 v{V_L16}, s[{S_B}:{S_B+3}], s{S_T0} offen offset:{i*1024} lds")
    def y_read(slot_sgpr):
        a(f"s_lshl_b32 s{S_T0}, s{slot_sgpr}, 12\nv_add_u32 v{V_A0}, s{S_T0}, v{V_YU}")
        a(f"s_lshl_b32 s{S_T0}, s{slot_sgpr}, 14\nv_add_u32 v{V_A1}, s{S_T0}, v{V_YZ}\nv_xor_b32 v{V_A2}, 128, v{V_A1}")
        a(f"ds_read_b128 v[{YF}:{YF+3}], v{V_A0}")
        for cz in range(4):
            a(f"ds_read_b128 v[{YF+4+4*cz}:{YF+7+4*cz}], v{V_A1 if cz % 2 == 0 else V_A2} offset:{(cz>>1)*256}")
    def px_issue(seg_sgpr):
        L = a.lab("L_pc"); Ld = a.lab("L_pcd")
        a(f"s_lshl_b32 s{S_T0}, s{seg_sgpr}, 2\ns_add_u32 s{S_T0}, s{S_T0}, {WS_FLAG}")
        a(f"v_mov_b32 v{V_T1}, 0\ns_mov_b32 s{S_CNT}, 0")
        a(f"{L}:")
        a(f"buffer_load_dword v{V_T0}, v{V_T1}, s[{S_MB}:{S_MB+3}], s{S_T0} offen sc1")
        a("s_waitcnt vmcnt(0)")
        a(f"v_readfirstlane_b32 s{S_T1}, v{V_T0}")
        a(f"s_add_u32 s{S_CNT}, s{S_CNT}, 1")
        a(f"s_cmp_ge_u32 s{S_T1}, 64\ns_cbranch_scc1 {Ld}")
        a(f"s_cmp_lt_u32 s{S_CNT}, s{S_SPIN}\ns_cbranch_scc1 {L}\ns_mov_b32 s{S_SPIN}, 0")
        a(f"{Ld}:")
        a(f"s_mul_i32 s{S_T0}, s{seg_sgpr}, 81920\ns_add_u32 s{S_T0}, s{S_T0}, s{S_X+6}")
        for i in range(20):
            if i % 4 == 0 and i: a(f"s_add_u32 s{S_T0}, s{S_T0}, 4096")
            a(f"buffer_load_dwordx4 v[{PX+4*i}:{PX+4*i+3}], v{V_L16}, s[{S_C}:{S_C+3}], s{S_T0} offen offset:{(i%4)*1024} sc1")
    def x_compute(seg_sgpr):
        a(f"s_and_b32 s{S_T3}, s{seg_sgpr}, 3")
        y_read(S_T3)
        a("s_waitcnt lgkmcnt(0)")
        for ch in range(5):
            for kq in range(4):
                ac = vr(UACC + 4*kq, 4); p = PX + 4*(4*ch + kq)
                a(f"v_mfma_f32_16x16x32_bf16 {ac}, v[{YF+4*ch}:{YF+4*ch+3}], v[{p}:{p+3}], {'0' if ch == 0 else ac}")
        a.nop(8)
        for qt in range(2):
            for r in range(4):
                a(f"v_cndmask_b32 v{TMP+4*qt+r}, v{UACC+8+4*qt+r}, v{UACC+4*qt+r}, s[{S_MASK}:{S_MASK+1}]")
        a(f"s_lshl_b32 s{S_T0}, s{S_WAVE}, 11\ns_add_u32 s{S_T0}, s{S_T0}, {R_XRED}\nv_add_u32 v{V_A0}, s{S_T0}, v{V_L16}")
        a(f"ds_write_b128 v{V_A0}, v[{TMP}:{TMP+3}]\nds_write_b128 v{V_A0}, v[{TMP+4}:{TMP+7}] offset:1024")
        a("s_waitcnt lgkmcnt(0)")
        a("s_barrier")
        Ls = a.lab("L_xs")
        a(f"s_cmp_lg_u32 s{S_WAVE}, 1\ns_cbranch_scc1 {Ls}")
        a(f"s_mul_i32 s{S_T0}, s{seg_sgpr}, 40960")
        a(f"buffer_load_dwordx2 v[{TMP}:{TMP+1}], v{V_OUT}, s[{S_D}:{S_D+3}], s{S_T0} offen")
        a(f"buffer_load_dwordx2 v[{TMP+2}:{TMP+3}], v{V_OUT}, s[{S_G}:{S_G+3}], s{S_T0} offen")
        B = PX
        for k in range(8):
            a(f"ds_read_b128 v[{B+4*k}:{B+4*k+3}], v{V_XRR} offset:{(k>>1)*2048 + (k&1)*512}")
        a("s_waitcnt lgkmcnt(0)")
        for st in (4, 2, 1):
            for k in range(st):
                for hh in range(2):
                    x = B + 4*k + 2*hh; y = B + 4*(k+st) + 2*hh
                    a(f"v_pk_add_f32 v[{x}:{x+1}], v[{x}:{x+1}], v[{y}:{y+1}]")
        a(f"v_cvt_pk_bf16_f32 v{B+4}, v{B}, v{B+1}\nv_cvt_pk_bf16_f32 v{B+5}, v{B+2}, v{B+3}")
        a("s_waitcnt vmcnt(0)")
        for hh in range(2):
            s_, x_, g_ = B+4+hh, TMP+hh, TMP+2+hh
            a(f"v_lshlrev_b32 v{B+8}, 16, v{s_}\nv_and_b32 v{B+9}, 0xffff0000, v{s_}")
            a(f"v_lshlrev_b32 v{B+10}, 16, v{g_}\nv_and_b32 v{B+11}, 0xffff0000, v{g_}")
            a(f"v_mul_f32 v{B+8}, v{B+8}, v{B+10}\nv_mul_f32 v{B+9}, v{B+9}, v{B+11}")
            a(f"v_cvt_pk_bf16_f32 v{B+8}, v{B+8}, v{B+9}")
            a(f"v_and_b32 v{B+9}, 0xffff0000, v{B+8}\nv_lshlrev_b32 v{B+8}, 16, v{B+8}")
            a(f"v_lshlrev_b32 v{B+10}, 16, v{x_}\nv_and_b32 v{B+11}, 0xffff0000, v{x_}")
            a(f"v_add_f32 v{B+8}, v{B+8}, v{B+10}\nv_add_f32 v{B+9}, v{B+9}, v{B+11}")
            a(f"v_cvt_pk_bf16_f32 v{B+6+hh}, v{B+8}, v{B+9}")
        a(f"buffer_store_dwordx2 v[{B+6}:{B+7}], v{V_OUT}, s[{S_E}:{S_E+3}], s{S_T0} offen")
        a(f"{Ls}:")
    a(f"s_mov_b32 s{S_STEP}, 0")
    z_dma(0)
    Lloop = a.lab("L_red")
    a(f"{Lloop}:")
    z_dma(1)
    S_LAG = S_X + 12
    a(f"s_sub_u32 s{S_LAG}, s{S_STEP}, 2")
    Ln1 = a.lab("L_n1")
    a(f"s_cmp_lt_u32 s{S_STEP}, 2\ns_cbranch_scc1 {Ln1}")
    px_issue(S_LAG)
    a(f"{Ln1}:")
    for r in range(16): a(f"v_mov_b32 v{UACC+r}, 0")
    a(f"s_cmp_lt_u32 s{S_STEP}, 32\ns_cselect_b32 s{S_SIDE_P}, s{S_SIDE_PA}, s{S_SIDE_PB}")
    poll_mem(a)
    stamp(a, 0)
    for nt in range(4):
        for ks in range(10):
            a(f"v_smfmac_f32_16x16x64_bf16 v[{UACC+4*nt}:{UACC+4*nt+3}], v[{MEMOP+4*ks}:{MEMOP+4*ks+3}], {R(192+8*(nt*10+ks),8)}, v{V_IDX}")
    a.nop(8)
    a(f"s_and_b32 s{S_T3}, s{S_STEP}, 3\ns_lshl_b32 s{S_T0}, s{S_T3}, 12\nv_add_u32 v{V_A0}, s{S_T0}, v{V_UW}")
    for pr in range(2):
        s0 = UACC + 8*pr
        for r in range(4): a(f"v_permlane32_swap_b32 v{s0+r}, v{s0+4+r}")
        a.nop(1)
        for r in range(4): a(f"v_add_f32 v{s0+r}, v{s0+r}, v{s0+4+r}")
        a(f"v_cvt_pk_bf16_f32 v{s0+4}, v{s0}, v{s0+1}\nv_cvt_pk_bf16_f32 v{s0+5}, v{s0+2}, v{s0+3}")
        a(f"ds_write_b64 v{V_A0}, v[{s0+4}:{s0+5}] offset:{pr*512}")
    Ln2 = a.lab("L_n2")
    a(f"s_cmp_lt_u32 s{S_STEP}, 2\ns_cbranch_scc1 {Ln2}")
    x_compute(S_LAG)
    a(f"{Ln2}:")
    a(f"s_and_b32 s{S_T3}, s{S_STEP}, 3")
    y_read(S_T3)
    stamp(a, 2)
    a(f"s_lshl_b32 s{S_T0}, s{S_STEP}, 16\ns_add_u32 s{S_T0}, s{S_T0}, s{S_SIDE_P}")
    for ch in range(5):
        a(f"s_add_u32 s{S_X+13+ch}, s{S_T0}, s{S_MASK+2+ch}")
    poll(a, 5, PM, [(V_L16, 0)]*5, S_PB, [S_X+13+ch for ch in range(5)], V_T0)
    a("s_waitcnt lgkmcnt(0)")
    for ch in range(5):
        ac = vr(UACC, 4)
        a(f"v_mfma_f32_16x16x32_bf16 {ac}, v[{YF+4*ch}:{YF+4*ch+3}], v[{PM+4*ch}:{PM+4*ch+3}], {'0' if ch == 0 else ac}")
    a(f"v_add_u32 v{V_A0}, s{S_X+7}, v{V_L16}")
    a.nop(7)
    a(f"v_add_u32 v{V_A0}, {R_RED}, v{V_A0}")
    a(f"ds_write_b128 v{V_A0}, v[{UACC}:{UACC+3}]")
    a("s_waitcnt lgkmcnt(0)")
    a("s_barrier")
    Ls = a.lab("L_ms")
    a(f"s_cmp_lg_u32 s{S_WAVE}, 0\ns_cbranch_scc1 {Ls}")
    B = PM
    for k in range(8):
        a(f"ds_read_b128 v[{B+4*k}:{B+4*k+3}], v{V_RR} offset:{(k>>1)*1024 + (k&1)*640}")
    a(f"s_add_u32 s{S_T0}, s{S_STEP}, 1\ns_lshl_b32 s{S_T0}, s{S_T0}, 15")
    a("s_waitcnt lgkmcnt(0)")
    for st in (4, 2, 1):
        for k in range(st):
            for hh in range(2):
                x = B + 4*k + 2*hh; y = B + 4*(k+st) + 2*hh
                a(f"v_pk_add_f32 v[{x}:{x+1}], v[{x}:{x+1}], v[{y}:{y+1}]")
    a(f"v_cvt_pk_bf16_f32 v{B+4}, v{B}, v{B+1}\nv_cvt_pk_bf16_f32 v{B+5}, v{B+2}, v{B+3}")
    a(f"v_min_u32 v{B+4}, -2, v{B+4}\nv_min_u32 v{B+5}, -2, v{B+5}")
    a(f"s_cmp_ge_u32 s{S_STEP}, {NSEG-1}\ns_cbranch_scc1 {Ls}")
    a(f"buffer_store_dwordx2 v[{B+4}:{B+5}], v{V_MST}, s[{S_MB}:{S_MB+3}], s{S_T0} offen sc1")
    stamp(a, 1)
    a(f"{Ls}:")
    a(f"s_add_u32 s{S_STEP}, s{S_STEP}, 1")
    a(f"s_cmp_lt_u32 s{S_STEP}, {NSEG}")
    a(f"s_cbranch_scc1 {Lloop}")
    for seg in (NSEG-2, NSEG-1):
        a(f"s_mov_b32 s{S_LAG}, {seg}")
        a("s_barrier")
        px_issue(S_LAG)
        a("s_waitcnt vmcnt(0)")
        x_compute(S_LAG)
    a("s_endpgm")

def gen_rec(a, name="rec_kernel"):
    kernel_begin(a, name)
    a(f"s_cmp_ge_u32 s2, {NQ+NR}")
    a("s_cbranch_scc1 L_rec_end")
    a(f"s_mov_b32 s{S_ID}, s2")
    a(f"s_load_dwordx2 s[{S_WSLO}:{S_WSHI}], s[0:1], {K_WS}")
    a(f"v_and_b32 v{V_LANE}, 63, v0\nv_lshrrev_b32 v{V_T0}, 6, v0")
    a.nop(1)
    a(f"v_readfirstlane_b32 s{S_WAVE}, v{V_T0}")
    a(f"v_lshlrev_b32 v{V_L16}, 4, v{V_LANE}")
    a(f"v_bfe_u32 v{V_T0}, v{V_LANE}, 3, 1\nv_mul_u32_u24 v{V_T0}, 0xaaaa, v{V_T0}\nv_add_u32 v{V_IDX}, 0x4444, v{V_T0}")
    a(f"s_mov_b32 s{S_SPIN}, {SPIN}")
    a("s_waitcnt lgkmcnt(0)")
    srd(a, S_MB, S_WSLO, S_WSHI, 7*MB)
    srd_off(a, S_PB, S_WSLO, S_WSHI, WS_PB, 4*MB)
    if TS: srd(a, 96, S_WSLO, S_WSHI, 8*MB)
    a(f"s_lshl_b32 s{S_X}, s2, 2\ns_add_u32 s{S_X}, s{S_X}, s{S_WAVE}")
    def b_mem():
        a(f"s_and_b32 s{S_T0}, s{S_X}, 63\ns_lshl_b32 s{S_T0}, s{S_T0}, 15\ns_lshr_b32 s{S_T1}, s{S_X}, 6\ns_lshl_b32 s{S_T1}, s{S_T1}, 7")
        a(f"s_add_u32 s{S_T0}, s{S_T0}, s{S_T1}\ns_add_u32 s{S_T0}, s{S_T0}, {16384+4096}")
    def b_p(reg):
        def f():
            a(f"s_and_b32 s{S_T0}, s{S_X}, 31\ns_add_u32 s{S_T0}, s{S_T0}, {32*reg}\ns_lshl_b32 s{S_T0}, s{S_T0}, 16")
            a(f"s_lshr_b32 s{S_T1}, s{S_X}, 5\ns_and_b32 s{S_T2}, s{S_T1}, 7\ns_lshl_b32 s{S_T2}, s{S_T2}, 7\ns_lshr_b32 s{S_T1}, s{S_T1}, 3\ns_lshl_b32 s{S_T1}, s{S_T1}, 12")
            a(f"s_add_u32 s{S_T0}, s{S_T0}, s{S_T1}\ns_add_u32 s{S_T0}, s{S_T0}, s{S_T2}\ns_add_u32 s{S_T0}, s{S_T0}, 49152")
        return f
    probe_side(a, S_MB, b_mem, S_SIDE_M)
    probe_side(a, S_PB, b_p(0), S_SIDE_PA)
    probe_side(a, S_PB, b_p(1), S_SIDE_PB)
    a(f"s_cmp_ge_u32 s2, {NQ}")
    a("s_cbranch_scc1 L_rec_red")
    gen_qk(a)
    a("L_rec_red:")
    for ch in range(5):
        a(f"s_mul_i32 s{S_T0}, s{S_WAVE}, 5\ns_add_u32 s{S_T0}, s{S_T0}, {ch}\ns_lshr_b32 s{S_T1}, s{S_T0}, 3\ns_lshl_b32 s{S_T1}, s{S_T1}, 14")
        a(f"s_and_b32 s{S_T0}, s{S_T0}, 7\ns_lshl_b32 s{S_T0}, s{S_T0}, 10\ns_add_u32 s{S_MASK+2+ch}, s{S_T0}, s{S_T1}")
    gen_red(a)
    a("L_rec_end:")
    a("s_endpgm")
    return kernel_desc(name, 512, 102, 256), (name, NQ+NR, 256, 163840)
```

```python
MB = 1 << 20
S, D, H, E, M, SEG, NSEG, F = 2048, 640, 32, 192, 8, 32, 64, 1536
K_X, K_MEM0, K_WQ, K_WK, K_WV, K_WO, K_SEGLEN, K_BX, K_WG, K_WU, K_WD, K_OUT, K_DBG, K_WS = [8*i for i in range(14)]
WS_MEMB = 0
WS_PB   = 2*MB
WS_FLAG = 6*MB
WS_XN   = 8*MB;  SZ_XN  = S*D*2
WS_G    = 12*MB; SZ_G   = S*D*2
WS_HX   = 16*MB; SZ_HX  = S*F*2
WS_PX   = 24*MB; SZ_PX  = NSEG*81920
WS_WVO  = 32*MB; SZ_WVO = H*D*D*2
WS_KX   = 64*MB; SZ_KX  = S*H*E*2
WS_QX   = 96*MB
WS_Z    = 128*MB; SZ_Z  = S*H*D*2
SZ_W = D*H*E*2
SZ_WB = D*F*2
```

```python
import sys
sys.path.insert(0, "gen")
from asmlib import *
from layout import *
import k_prep, k_gemm
NAME = "recurrent_scan__memory_aug_recurrent_mem_tr__glu_gated_bilinear__prompt"
def build(path, with_rec=True):
    a = Asm()
    hdr = open(f"cdna_kernels/{NAME}.s.ref").read().split("\n")
    hdr = [l for l in hdr if l.startswith(";") and "@launch" not in l and "Override" not in l and "grid=ceil" not in l]
    launches = [
        ("prep_kernel", 256, 256, 0),
        ("wvo_kernel", 160, 256, 73728),
        ("qk_kernel", 512, 256, 73728),
        ("vz_kernel", 256, 256, 73728),
        ("b1_kernel", 192, 256, 65536),
        ("b2_kernel", 40, 256, 65536),
    ]
    descs = []
    descs.append(k_prep.gen_prep(a))
    descs.append(k_gemm.simple_kernel(a, "wvo_kernel", 160, k_gemm.item_wvo))
    descs.append(k_gemm.simple_kernel(a, "qk_kernel", 512, k_gemm.item_qk))
    descs.append(k_gemm.simple_kernel(a, "vz_kernel", 256, k_gemm.item_vz))
    descs.append(k_gemm.simple_kernel(a, "b1_kernel", 192, k_gemm.item_b1))
    descs.append(k_gemm.simple_kernel(a, "b2_kernel", 40, k_gemm.item_b2))
    if with_rec:
        import k_rec
        d, l = k_rec.gen_rec(a)
        descs.append(d); launches.append(l)
    out = "\n".join(hdr) + "\n"
    for n, g, b, lds in launches:
        out += f"; @launch kernel={n} grid=({g},1,1) block=({b},1,1) lds={lds}\n"
    out += '.amdgcn_target "amdgcn-amd-amdhsa--gfx950"\n.text\n' + a.text()
    out += '.section .rodata,"a"\n' + "".join(".p2align 6\n" + d for d in descs)
    open(path, "w").write(out)
if __name__ == "__main__":
    build(sys.argv[1] if len(sys.argv) > 1 else f"cdna_kernels/{NAME}.s", with_rec=(len(sys.argv) <= 2))
```
